```python
import torch

def _softmax(x, axis=-1):
    return torch.softmax(x, dim=axis)
def _gelu(x):
    return torch.nn.functional.gelu(x, approximate="tanh")
def _silu(x):
    return torch.nn.functional.silu(x)
def _sigmoid(x):
    return torch.sigmoid(x)
def _layernorm(x, axis=-1, eps=1e-5):
    m = x.mean(dim=axis, keepdim=True)
    v = x.var(dim=axis, keepdim=True, unbiased=False)
    return (x - m) / torch.sqrt(v + eps)
def _scatter_add(tgt, idx, src, axis=0):
    return tgt.clone().index_add_(axis, idx, src)
def _segment_sum(src, seg, n):
    out = torch.zeros((n,) + src.shape[1:], dtype=src.dtype)
    return out.index_add_(0, seg, src)
def _pad(x, pw):
    flat = tuple(v for pair in reversed(pw) for v in pair)
    return torch.nn.functional.pad(x, flat)

kernel_name = 'interleave_layers__sliding_block__sliding_local_dilated__prompt'

def setup_inputs():

    _w = (lambda a: (lambda t: t.to(torch.bfloat16) if t.is_floating_point() else t)(torch.as_tensor(a)))
    def _A_setup():
        B, S, D = 1, 2048, 1024
        return {
            "x": _w((lambda *s: torch.randn(*s, dtype=torch.bfloat16) * 0.05)(B, S, D)),
            "wqkv": _w((lambda *s: torch.randn(*s, dtype=torch.bfloat16) * 0.05)(D, 3 * D)),
            "wo": _w((lambda *s: torch.randn(*s, dtype=torch.bfloat16) * 0.05)(D, D)),
        }
    _A_in = _A_setup()

    def _B_setup():
        B, S, D = 1, 2048, 1024
        return {
            "x": _w((lambda *s: torch.randn(*s, dtype=torch.bfloat16) * 0.05)(B, S, D)),
            "wqkv": _w((lambda *s: torch.randn(*s, dtype=torch.bfloat16) * 0.05)(D, 3 * D)),
            "wo": _w((lambda *s: torch.randn(*s, dtype=torch.bfloat16) * 0.05)(D, D)),
        }
    _B_in = _B_setup()

    return {
        "A_x": _A_in["x"],
        "A_wqkv": _A_in["wqkv"],
        "A_wo": _A_in["wo"],
        "B_x": _B_in["x"],
        "B_wqkv": _B_in["wqkv"],
        "B_wo": _B_in["wo"],
    }

def reference(A_x, A_wqkv, A_wo, B_x, B_wqkv, B_wo):
    def _A_ref(x, wqkv, wo):
        B, S, D = x.shape
        H = 32; Dh = D // H; W = 256
        qkv = (lambda x, *d: x.permute(*d))((x @ wqkv).reshape(B, S, 3, H, Dh), 2, 0, 3, 1, 4)
        q, k, v = qkv[0], qkv[1], qkv[2]
        scores = torch.einsum("bhqd,bhkd->bhqk", q, k) * (Dh ** -0.5)
        idx = torch.arange(S)
        mask = (idx[:, None] - idx[None, :] >= 0) & (idx[:, None] - idx[None, :] < W)
        scores = torch.where(mask[None, None], scores, -1e9)
        p = _softmax(scores, axis=-1)
        o = torch.einsum("bhqk,bhkd->bhqd", p, v)
        return (lambda x, *d: x.permute(*d))(o, 0, 2, 1, 3).reshape(B, S, D) @ wo

    def _B_ref(x, wqkv, wo):
        B, S, D = x.shape
        H = 32; Dh = D // H
        W, dil = 8, 2
        qkv = (lambda x, *d: x.permute(*d))((x @ wqkv).reshape(B, S, 3, H, Dh), 2, 0, 3, 1, 4)
        q, k, v = qkv[0], qkv[1], qkv[2]
        scale = Dh ** -0.5
        pos = torch.arange(S)
        off = torch.arange(W) * dil
        idx = pos[:, None] - off[None, :]
        mask = idx >= 0
        idx_c = torch.where(mask, idx, 0).reshape(-1)
        kg = k[:, :, idx_c, :].reshape(B, H, S, W, Dh)
        vg = v[:, :, idx_c, :].reshape(B, H, S, W, Dh)
        logits = torch.einsum("bhsd,bhswd->bhsw", q, kg) * scale
        logits = torch.where(mask[None, None, :, :], logits, -1e9)
        attn = _softmax(logits, axis=-1)
        o = torch.einsum("bhsw,bhswd->bhsd", attn, vg)
        return (lambda x, *d: x.permute(*d))(o, 0, 2, 1, 3).reshape(B, S, D) @ wo

    x = A_x
    x = x + _A_ref(_layernorm(x, axis=-1), A_wqkv, A_wo)
    x = x + _B_ref(_layernorm(x, axis=-1), B_wqkv, B_wo)
    x = x + _A_ref(_layernorm(x, axis=-1), A_wqkv, A_wo)
    x = x + _B_ref(_layernorm(x, axis=-1), B_wqkv, B_wo)
    return x
```

```python
KNAME = "interleave_layers__sliding_block__sliding_local_dilated__prompt_kernel"

class Asm:
    def __init__(self):
        self.lines = []
        self.nlab = 0
    def __call__(self, s="", *a):
        for ln in s.split("\n"):
            self.lines.append(ln if ln.endswith(":") else "    " + ln.strip())
    def label(self, name): self.lines.append(name + ":")
    def newlabel(self, p="L"):
        self.nlab += 1
        return f"{p}_{self.nlab}"
    def c(self, s): self.lines.append("    ; " + s)
    def text(self): return "\n".join(self.lines) + "\n"

def srd(a, d, base, nbytes, off=0):
    if off:
        a(f"s_add_u32 s{d}, s{base}, {off}")
        a(f"s_addc_u32 s{d+1}, s{base+1}, 0")
    else:
        a(f"s_mov_b32 s{d}, s{base}")
        a(f"s_mov_b32 s{d+1}, s{base+1}")
    a(f"s_mov_b32 s{d+2}, {nbytes}")
    a(f"s_mov_b32 s{d+3}, 0x00020000")

def kernel_file(header_lines, kernels):
    out = []
    out += header_lines
    out.append('.amdgcn_target "amdgcn-amd-amdhsa--gfx950"')
    out.append(".text")
    for name, body, v, s, acc in kernels:
        out.append(f".globl {name}")
        out.append(".p2align 8")
        out.append(f".type {name},@function")
        out.append(f"{name}:")
        out.append(body)
    out.append('.section .rodata,"a"')
    for name, body, v, s, acc in kernels:
        out.append(".p2align 6")
        out.append(f".amdhsa_kernel {name}")
        out.append(f"  .amdhsa_next_free_vgpr {v}")
        out.append(f"  .amdhsa_next_free_sgpr {s}")
        out.append(f"  .amdhsa_accum_offset {acc}")
        out.append("  .amdhsa_group_segment_fixed_size 0")
        out.append("  .amdhsa_kernarg_size 72")
        out.append("  .amdhsa_user_sgpr_count 2")
        out.append("  .amdhsa_user_sgpr_kernarg_segment_ptr 1")
        out.append("  .amdhsa_system_sgpr_workgroup_id_x 1")
        out.append(".end_amdhsa_kernel")
    return "\n".join(out) + "\n"
```

```python
import re

def regs(op):
    op = op.strip()
    op = op.lstrip("-")
    m = re.fullmatch(r"abs\((.*)\)", op) or re.fullmatch(r"\|(.*)\|", op)
    if m: op = m.group(1)
    m = re.fullmatch(r"([vsa])(\d+)", op)
    if m: return {(m.group(1), int(m.group(2)))}
    m = re.fullmatch(r"([vsa])\[(\d+):(\d+)\]", op)
    if m: return {(m.group(1), i) for i in range(int(m.group(2)), int(m.group(3)) + 1)}
    if op in ("vcc", "vcc_lo", "vcc_hi"): return {("vcc", 0)}
    if op in ("exec", "exec_lo", "exec_hi"): return {("exec", 0)}
    if op == "m0": return {("m0", 0)}
    return set()

TRANS = ("v_exp_", "v_log_", "v_rcp_", "v_rsq_", "v_sqrt_", "v_sin_", "v_cos_")

class I:
    def __init__(self, text):
        self.text = text
        t = text.split(";")[0].strip()
        self.label = t[:-1] if t.endswith(":") else None
        self.op = ""; self.d = set(); self.u = set(); self.ops = []
        if self.label or not t or t.startswith("."): return
        p = t.split(None, 1)
        self.op = p[0]
        rest = p[1] if len(p) > 1 else ""
        ops = [x.strip() for x in re.split(r",(?![^\[]*\])", rest)] if rest else []
        if ops:
            last = ops[-1].split()
            self.mods = " ".join(last[1:]); ops[-1] = last[0]
        else: self.mods = ""
        self.ops = ops
        o = self.op
        R = [regs(x) for x in ops]
        self.valu = o.startswith("v_") and not o.startswith("v_mfma")
        self.mfma = o.startswith("v_mfma")
        self.ds = o.startswith("ds_"); self.vmem = o.startswith("buffer_") or o.startswith("global_")
        self.salu = o.startswith("s_")
        if self.mfma:
            self.d = R[0]; self.A = R[1]; self.B = R[2]; self.C = R[3]; self.u = R[1] | R[2] | R[3]
            self.passes = 8 if "32x32" in o else 4
        elif self.valu:
            if o.startswith("v_cmp"):
                self.d = set(R[0]); self.u = set().union(*R[1:])
                if o.startswith("v_cmpx"): self.d |= {("exec", 0)}
            elif o.startswith("v_permlane") and "swap" in o:
                self.d = R[0] | R[1]; self.u = R[0] | R[1]
            elif "_co_" in o or o.startswith("v_div_scale") or o.startswith("v_mad_u64"):
                self.d = R[0] | R[1]; self.u = set().union(*R[2:])
            else:
                self.d = set(R[0]); self.u = set().union(*R[1:]) if len(R) > 1 else set()
                if o.startswith(("v_fmac", "v_dot2c", "v_writelane", "v_pk_fmac")): self.u |= R[0]
        elif self.ds:
            if o.startswith(("ds_read", "ds_bpermute", "ds_permute", "ds_swizzle")): self.d = R[0]; self.u = set().union(*R[1:])
            else: self.u = set().union(*R)
        elif self.vmem:
            if o in ("buffer_wbl2", "buffer_inv"): pass
            elif "lds" in self.mods.split(): self.u = set().union(*R) | {("m0", 0)}; self.dma = True
            elif "load" in o: self.d = R[0]; self.u = set().union(*R[1:])
            else:
                self.u = set().union(*R); self.data = R[0] if o.startswith("buffer") else R[1]
                if "atomic" in o and "sc0" in self.mods.split(): self.d = R[0]
        elif self.salu:
            if o.startswith(("s_cmp", "s_bitcmp", "s_cbranch", "s_branch", "s_waitcnt", "s_barrier", "s_nop", "s_sleep", "s_setprio", "s_endpgm")):
                self.u = set().union(*R) if R else set()
            else:
                self.d = set(R[0]) if R else set(); self.u = set().union(*R[1:]) if len(R) > 1 else set()
                if "saveexec" in o: self.d |= {("exec", 0)}
    def states(self):
        if self.label or not self.op: return 0
        if self.op == "s_nop": return int(self.ops[0], 0) + 1
        return 1

def need(p, c):
    n = 0
    if not p.op or not c.op: return 0
    V = lambda s: {r for r in s if r[0] in "va" and r[0] != "vcc"}
    S = lambda s: {r for r in s if r[0] in ("s", "vcc")}
    if p.valu:
        pv, ps = V(p.d), S(p.d)
        if c.mfma and pv & c.u: n = max(n, 2)
        if c.valu and c.op.startswith("v_permlane") and pv & c.u: n = max(n, 2)
        if c.valu and ("dpp" in c.op or "row_" in c.mods or "quad_perm" in c.mods) and pv & c.u: n = max(n, 2)
        if c.valu and c.op.startswith(("v_readlane", "v_readfirstlane")) and pv & c.u: n = max(n, 1)
        if p.op.startswith(TRANS) and (c.valu or c.mfma) and pv & c.u: n = max(n, 1)
        if p.op.startswith("v_dot") and (c.valu or c.vmem or c.ds or c.mfma) and pv & (c.u | c.d):
            same = c.op == p.op and not (pv & (regs(c.ops[1]) | regs(c.ops[2])))
            if not same: n = max(n, 3)
        if ps:
            if c.vmem and ps & c.u: n = max(n, 5)
            if (c.valu or c.mfma) and (ps & c.u or (("vcc", 0) in ps and c.op.startswith(("v_cndmask", "v_addc", "v_subb")))): n = max(n, 4 if c.op.startswith(("v_readlane", "v_writelane")) else 2)
            if c.salu and (ps & c.u or (("vcc", 0) in ps and "vcc" in c.op)): n = max(n, 1)
        if ("exec", 0) in p.d and (c.valu or c.mfma): n = max(n, 5)
        if "op_sel" in p.mods and not p.op.startswith("v_pk_") and c.valu and pv & (c.u | c.d): n = max(n, 1)
    if p.mfma:
        big, mid, war = (12, 10, 7) if p.passes == 8 else (8, 6, 3)
        if c.mfma:
            if p.d & (c.A | c.B): n = max(n, big)
            if p.d & c.C and not (p.d == c.C and p.passes == c.passes): n = max(n, mid)
            if p.d & c.d and not (p.d == c.d and p.passes == c.passes): n = max(n, big)
        elif c.valu or c.vmem or c.ds:
            if p.d & (c.u | c.d): n = max(n, big)
            if c.valu and p.C & c.d: n = max(n, war)
    if p.vmem and hasattr(p, "data") and ("x3" in p.op or "x4" in p.op) and V(p.data) & c.d: n = max(n, 2)
    if p.salu and ("m0", 0) in p.d and hasattr(c, "dma"): n = max(n, 1)
    if p.salu and ("m0", 0) in p.d and c.valu and ("m0", 0) in c.u: n = max(n, 1)
    return n

def fix(text, verbose=False):
    lines = text.split("\n")
    total = 0
    while True:
        ins = [I(l) for l in lines]
        lab = {x.label: i for i, x in enumerate(ins) if x.label}
        br = {}
        for i, x in enumerate(ins):
            if x.op.startswith(("s_cbranch", "s_branch")): br.setdefault(lab[x.ops[0]], []).append(i)
        add = {}
        for i, c in enumerate(ins):
            if not c.op: continue
            worst = 0
            stack = [(i, 0)]; seen = {}
            while stack:
                k, dist = stack.pop()
                preds = []
                if k > 0 and not (ins[k-1].op in ("s_branch", "s_endpgm")): preds.append(k - 1)
                if ins[k].label: preds += br.get(k, [])
                for q in preds:
                    p = ins[q]
                    if p.op:
                        n = need(p, c)
                        if n > dist: worst = max(worst, n - dist)
                    d2 = dist + p.states()
                    if d2 < 12 and seen.get(q, 99) > d2:
                        seen[q] = d2; stack.append((q, d2))
            if worst: add[i] = worst
        if not add: break
        out = []; last = -100
        for i, l in enumerate(lines):
            if i in add and i - last > 12:
                out.append(f"    s_nop {add[i]-1}"); total += 1; last = i
                if verbose: print("nop", add[i], "before", l.strip())
            out.append(l)
        lines = out
    return "\n".join(lines), total
```

```python
import sys, os, struct, math
HERE = os.path.dirname(os.path.abspath(__file__)); sys.path.insert(0, HERE + "/../tools")
from asmlib import *
import hazard

MB = 1 << 20
ST, CSP, FL, RGN, XF, STAMP = 0, 256 * 1024, 640 * 1024, 2 * MB, 18 * MB, 70 * MB
XFL, OFL, CSFL, NONCE, KVFL, SFL = FL, FL + 32768, FL + 98304, FL + 114688, FL + 131072, FL + 262144
OF, KVA = 256 * 1024, 512 * 1024
WS_SIZE = 72 * MB
XB = [48 * 1024, 64 * 1024, 80 * 1024]
WB = [136 * 1024, 0, 24 * 1024]
TAB = 128 * 1024
QOFF = 24 * 1024
OWN_A, OWN_B, RB1, RB2 = 32 * 1024, 128 * 1024, 64 * 1024, 128 * 1024
BIG = 0xF149F2CA
QSCALE = struct.unpack("<I", struct.pack("<f", 32 ** -0.5 * math.log2(math.e)))[0]
WSTEP = 64 * 6144
SPIN = 1 << 18
RT = 0; TRACE = 0; PH = None; SKIP = []; G2ST = 0; FORCE_EXACT = 0; DBGT = 0
G2L = 2; G2D = 12; HOT = 1; HOTD = 4; WTOUCH = 0; WTL = 48; W2AT = 'T'; APRIO = 1; QPOST = 6
BW1 = list(range(0, 6)) + list(range(8, 16)); BW2 = []; BW3 = list(range(16, 24)); LATE0 = 28; G2OWN = 1; POLL2 = 0; E2Z = 1; RM0 = 0; SLABJ = 1; WOHOT = 10; HOTF = 1; HOTX = 0; HOTS = 0; SWARM = 0; SAT = 32; WPACE = 0; IDLE = 0; XOUT = 1;
WARM = [("wo", 0, 16), ("o", 0, 32)]; WBZ = 1
STF = ''; LDF = ' sc1'; PREW = 0; HOT0 = (0, 5); DIAG = 0; WT0 = 0; PROG = 8; POSTD = 4; SLB = 24; DOTSUM = 0; BARM = 1; PVAT = (7, 10, 13, 16); SAT2 = 3; WOBW = 0;
S2AT = 0;  CODEPF = 12; HALOY = 0

sW, sWO, sWS, sIO, sXS = 4, 8, 12, 16, 88
sWID, sRB, sJ, sL, sFAST, sN0, sN1 = 3, 20, 21, 22, 23, 24, 25
sT = list(range(26, 48))
pX, pWA, pWOA, pWB, pWOB, pOUT, pDBG, pWS = 48, 50, 52, 56, 58, 60, 62, 64
sT0 = 66
sLK, sKSH = 72, 73
sCNT, sSLOT, sXO, sWOF, sMX, sMW = 74, 75, 76, 77, 78, 79
sWQ, sWR = 95, 96
sROT, sRM = 98, 99
sXST = 71
sOWN, sWP, sWH, sXSH = 84, 85, 86, 87
vL16, vLANE, vTR, vCH, vWO, vSTAMP = 0, 1, 2, 3, 4, 6
vCS0, vCS1 = 20, 21
XRES = 8
vDUM = 255

def vr(r, n): return f"v[{r}:{r+n-1}]"
def sr(r, n=4): return f"s[{r}:{r+n-1}]"

class G(Asm):
    def __init__(self, stamps):
        super().__init__(); self.stamps = stamps; self.names = []
    def stamp(self, name):
        if PH and name == PH[0]:
            l = self.newlabel("Lph")
            self(f"s_cmp_lg_u32 s{sL}, {PH[1]}"); self(f"s_cbranch_scc1 {l}")
            self("s_memrealtime s[92:93]"); self("s_waitcnt lgkmcnt(0)"); self("s_sub_u32 s94, s92, s80"); self.label(l)
        if not self.stamps or SKIP == 'all' or name in SKIP: return
        self.names.append(name)
        self(f"s_sub_u32 s68, s82, s{80 if RT else sT0}")
        self("s_memrealtime s[82:83]" if RT else "s_memtime s[82:83]")
        self("s_mov_b32 s69, m0"); self("s_mov_b32 m0, s70"); self("s_add_u32 s70, s70, 1"); self(f"v_writelane_b32 v{vSTAMP}, s68, m0"); self("s_mov_b32 m0, s69")
    def wave_if(self, cond, imm):
        l = self.newlabel("Lw")
        self(f"s_cmp_{cond}_u32 s{sWID}, {imm}"); self(f"s_cbranch_scc0 {l}")
        return l
    def stores(self, L):
        if not WT0:
            for x in L: self(x)
            return
        l0, l1 = self.newlabel("Lwt"), self.newlabel("Lwt")
        self(f"s_cmp_eq_u32 s{sL}, 0"); self(f"s_cbranch_scc1 {l0}")
        for x in L: self(x)
        self(f"s_branch {l1}"); self.label(l0)
        for x in L: self(x + " sc1")
        self.label(l1)
    def post(self, vaddr, vt, cross, wt=None):
        self(f"v_mov_b32 v{vt}, s{sN0}"); self(f"v_mov_b32 v{vt+1}, s{sN1}")
        self("s_mov_b64 exec, 1")
        if cross:
            self(f"buffer_store_dwordx2 {vr(vt,2)}, v{vaddr}, {sr(sWS)}, 0 offen sc1")
        else:
            sl, dn, w0 = self.newlabel("Lslow"), self.newlabel("Lpd"), self.newlabel("Lw0")
            if wt is not None and WT0: self(f"s_cmp_eq_u32 s{sL}, {wt}"); self(f"s_cbranch_scc1 {w0}")
            self(f"s_cmp_eq_u32 s{sFAST}, 0"); self(f"s_cbranch_scc1 {sl}")
            self(f"buffer_store_dwordx2 {vr(vt,2)}, v{vaddr}, {sr(sWS)}, 0 offen")
            self(f"s_branch {dn}")
            self.label(sl)
            self("buffer_wbl2 sc1"); self("s_waitcnt vmcnt(0)")
            self.label(w0)
            self(f"buffer_store_dwordx2 {vr(vt,2)}, v{vaddr}, {sr(sWS)}, 0 offen sc1")
            self.label(dn)
        self("s_mov_b64 exec, -1")
    def flagbits(self, vt):
        self(f"v_xor_b32 v{vt+2}, s{sN0}, v{vt}"); self(f"v_xor_b32 v{vt+3}, s{sN1}, v{vt+1}")
        self(f"v_lshrrev_b32 v{vt+3}, 4, v{vt+3}"); self(f"v_or_b32 v{vt+2}, v{vt+2}, v{vt+3}")
        self(f"v_cmp_ne_u32 vcc, 0, v{vt+2}")
    def flagtest(self, vt, ok):
        self(f"v_xor_b32 v{vt+2}, s{sN0}, v{vt}"); self(f"v_xor_b32 v{vt+3}, s{sN1}, v{vt+1}")
        self(f"v_lshrrev_b32 v{vt+3}, 4, v{vt+3}"); self(f"v_or_b32 v{vt+2}, v{vt+2}, v{vt+3}")
        self(f"v_cmp_ne_u32 vcc, 0, v{vt+2}"); self(f"s_cbranch_vccz {ok}")
    def poll(self, vaddr, vt, acquire):
        lp, ok = self.newlabel("Lpoll"), self.newlabel("Lok")
        self(f"s_mov_b32 s{sT[0]}, 0")
        self.label(lp)
        self(f"buffer_load_dwordx2 {vr(vt,2)}, v{vaddr}, {sr(sWS)}, 0 offen sc1")
        self("s_waitcnt vmcnt(0)")
        self.flagtest(vt, ok)
        self(f"s_add_u32 s{sT[0]}, s{sT[0]}, 1"); self(f"s_cmp_lt_u32 s{sT[0]}, {SPIN}"); self(f"s_cbranch_scc1 {lp}")
        self.label(ok)
    def poll2(self, vaddr, va, vb):
        if not POLL2: return self.poll(vaddr, va, False)
        lp, ok = self.newlabel("Lpoll"), self.newlabel("Lok")
        ld = lambda v: self(f"buffer_load_dwordx2 {vr(v,2)}, v{vaddr}, {sr(sWS)}, 0 offen sc1")
        self(f"s_mov_b32 s{sT[0]}, 0")
        ld(va); self(f"s_sleep {POLL2}"); ld(vb)
        self.label(lp)
        self("s_waitcnt vmcnt(1)"); self.flagtest(va, ok); ld(va)
        self("s_waitcnt vmcnt(1)"); self.flagtest(vb, ok); ld(vb)
        self(f"s_add_u32 s{sT[0]}, s{sT[0]}, 1"); self(f"s_cmp_lt_u32 s{sT[0]}, {SPIN}"); self(f"s_cbranch_scc1 {lp}")
        self.label(ok)
    def acquire(self):
        dn = self.newlabel("Lacq")
        self(f"s_cmp_eq_u32 s{sFAST}, 0"); self(f"s_cbranch_scc0 {dn}")
        self("buffer_inv sc1"); self("s_waitcnt vmcnt(0)")
        self.label(dn)

def sel_const(a, d, t):
    a(f"v_lshrrev_b32 v{t}, 2, v{vLANE}"); a(f"v_lshrrev_b32 v{t+1}, 4, v{vLANE}"); a(f"v_xor_b32 v{t}, v{t}, v{t+1}"); a(f"v_bfe_i32 v{t}, v{t}, 0, 1")
    a(f"v_not_b32 v{t}, v{t}"); a(f"v_and_b32 v{d}, 0x3f803f80, v{t}")
    for i in range(1, 4): a(f"v_mov_b32 v{d+i}, v{d}")
def mfma32(a, d, A, B, C): a(f"v_mfma_f32_32x32x16_bf16 {vr(d,16)}, {vr(A,4)}, {vr(B,4)}, {C if isinstance(C,str) else vr(C,16)}")
def mfma16(a, d, A, B, C): a(f"v_mfma_f32_16x16x32_bf16 {vr(d,4)}, {vr(A,4)}, {vr(B,4)}, {C if isinstance(C,str) else vr(C,4)}")

def tile_flag(a, v, base, shift, layer_add, tile, mine):
    s = sT[1]
    a(f"s_add_u32 s{s}, s{sL}, {layer_add}"); a(f"s_lshl_b32 s{s}, s{s}, 4"); a(f"s_add_u32 s{s}, s{s}, s{sRB}"); a(f"s_lshl_b32 s{s}, s{s}, 2"); a(f"s_add_u32 s{s}, s{s}, s{tile}")
    a(f"s_lshl_b32 s{s}, s{s}, {shift}"); a(f"s_add_u32 s{s}, s{s}, {base}")
    if isinstance(mine, str): a(f"s_lshl_b32 s{s+1}, {mine}, 3"); a(f"s_add_u32 s{s}, s{s}, s{s+1}"); a(f"v_mov_b32 v{v}, s{s}")
    else: a(f"v_and_b32 v{v}, {mine}, v{vLANE}"); a(f"v_lshl_add_u32 v{v}, v{v}, 3, s{s}")

def x_frags(a):
    s = sT[1]; assert XOUT
    a(f"s_lshl_b32 s{s}, s{sRB}, 2"); a(f"s_add_u32 s{s}, s{s}, s{sWID}")
    a(f"s_lshl_b32 s{s}, s{s}, 16"); a(f"s_lshl_b32 s{sXST}, s{sJ}, 12"); a(f"s_add_u32 s{sXST}, s{sXST}, s{s}")
    return [f"buffer_store_dwordx4 {vr(XRES+4*f,4)}, v{vL16}, {sr(sIO)}, s{sXST} offen offset:{f*1024}{STF}" for f in range(4)]
def x_stats(a, T):
    s = sT[1]
    a(f"s_mov_b32 s{s+3}, 0x3f803f80")
    for i in range(16):
        o = 2 * (i & 1)
        a(f"v_dot2_f32_bf16 v{T+o}, v{XRES+i}, s{s+3}, {'0' if i < 2 else 'v%d' % (T+o)}"); a(f"v_dot2_f32_bf16 v{T+o+1}, v{XRES+i}, v{XRES+i}, {'0' if i < 2 else 'v%d' % (T+o+1)}")
    a(f"v_lshlrev_b32 v{T+4}, 3, v{vLANE}")
    a(f"v_pk_add_f32 {vr(T,2)}, {vr(T,2)}, {vr(T+2,2)}")
    a(f"v_mov_b32 v{T+2}, v{T}"); a(f"v_mov_b32 v{T+3}, v{T+1}")
    a(f"v_permlane32_swap_b32 v{T}, v{T+2}"); a(f"v_permlane32_swap_b32 v{T+1}, v{T+3}")
    a(f"v_pk_add_f32 {vr(T,2)}, {vr(T,2)}, {vr(T+2,2)}")
def stats_store(a, fl, T):
    s = sT[1]
    a(f"s_lshl_b32 s{s}, s{sRB}, 2"); a(f"s_add_u32 s{s}, s{s}, s{sWID}")
    a(f"s_lshl_b32 s{s+2}, s{s}, 12"); a(f"s_lshl_b32 s{s+4}, s{sJ}, 8"); a(f"s_add_u32 s{s+2}, s{s+2}, s{s+4}"); assert ST == 0
    a("s_mov_b32 exec_hi, 0")
    a(f"buffer_store_dwordx2 {vr(T,2)}, v{T+4}, {sr(sWS)}, s{s+2} offen{fl}")
    a("s_mov_b64 exec, -1")

def io_addr(a, v):
    s = sT[1]
    a(f"s_lshl_b32 s{s}, s{sRB}, 2"); a(f"s_add_u32 s{s}, s{s}, s{sWID}"); a(f"s_lshl_b32 s{s}, s{s}, 16"); a(f"s_lshl_b32 s{s+1}, s{sJ}, 7"); a(f"s_add_u32 s{s}, s{s}, s{s+1}")
    a(f"v_and_b32 v{v}, 31, v{vLANE}"); a(f"v_lshlrev_b32 v{v}, 11, v{v}"); a(f"v_lshrrev_b32 v{v+1}, 5, v{vLANE}"); a(f"v_lshlrev_b32 v{v+1}, 4, v{v+1}")
    a(f"v_add3_u32 v{v}, v{v}, v{v+1}, s{s}")
def half_swaps(a):
    for f in range(4):
        a(f"v_permlane32_swap_b32 v{XRES+4*f}, v{XRES+4*f+2}"); a(f"v_permlane32_swap_b32 v{XRES+4*f+1}, v{XRES+4*f+3}")
def next_layer(a):
    a(f"s_add_u32 s{sL}, s{sL}, 1"); a(f"s_mov_b32 s{sROT}, s{sJ}"); a(f"s_mov_b32 s{sRM}, 15")
    a(f"s_lshr_b32 s{sLK}, s{sL}, 1"); a(f"s_lshl_b32 s{sLK}, s{sLK}, 17"); a(f"s_add_u32 s{sLK}, s{sLK}, {RGN - 3*8192}")
    a(f"s_bitcmp1_b32 s{sL}, 0"); a(f"s_cselect_b32 s{sLK}, s{sLK}, {RGN + KVA}"); a(f"s_cselect_b32 s{sKSH}, 13, 15")
    a(f"s_bitcmp1_b32 s{sL}, 0"); a(f"s_cselect_b32 s{sWO}, s{pWOB}, s{pWOA}"); a(f"s_cselect_b32 s{sWO+1}, s{pWOB+1}, s{pWOA+1}")
    a(f"s_cselect_b32 s{sW}, s{pWB}, s{pWA}"); a(f"s_cselect_b32 s{sW+1}, s{pWB+1}, s{pWA+1}")
    a(f"s_and_b32 s{sT[1]}, s{sL}, 1"); a(f"s_lshl_b32 s{sT[1]}, s{sT[1]}, 1"); a(f"s_lshl_b32 s{sOWN}, {OWN_A}, s{sT[1]}"); assert OWN_B == 4 * OWN_A

LX, LW, vHOT = 8, 12, 18
def loader_setup_w(a):
    s = sT[1]
    a(f"s_sub_u32 s{s}, s{sWID}, 4")
    a(f"s_lshl_b32 s{sMX}, s{s}, 12"); a(f"s_mul_i32 s{sMW}, s{s}, 6144")
    a(f"v_lshrrev_b32 v{LW}, 3, v{vLANE}"); a(f"v_mul_u32_u24 v{LW}, 6144, v{LW}"); a(f"v_add_u32 v{LW}, v{LW}, v{vCH}")
    a(f"s_mul_i32 s{s+1}, s{s}, {16*6144}"); a(f"s_lshl_b32 s{s+2}, s{sJ}, 7"); a(f"s_add_u32 s{s+1}, s{s+1}, s{s+2}"); a(f"v_add_u32 v{LW}, s{s+1}, v{LW}")
    for k in range(1, 6): a(f"v_add_u32 v{LW+k}, {(k//3)*8*6144 + (k%3)*1024}, v{LW}")
def loader_setup_x(a, first):
    s = sT[1]
    a(f"s_sub_u32 s{s}, s{sWID}, 4"); a(f"s_lshl_b32 s{s+1}, s{sRB}, 2"); a(f"s_add_u32 s{s}, s{s}, s{s+1}"); a(f"s_lshl_b32 s{s}, s{s}, 16")
    if first:
        a(f"s_mov_b32 s{sXSH}, 7")
        a(f"v_lshrrev_b32 v{LX+1}, 4, v{vLANE}"); a(f"v_and_b32 v{LX+2}, 7, v{vLANE}"); a(f"v_xor_b32 v{LX+1}, v{LX+1}, v{LX+2}"); a(f"v_lshlrev_b32 v{LX+1}, 4, v{LX+1}")
        a(f"v_lshrrev_b32 v{LX+2}, 3, v{vLANE}"); a(f"v_lshlrev_b32 v{LX+2}, 11, v{LX+2}"); a(f"v_add3_u32 v{LX}, v{LX+1}, v{LX+2}, s{s}")
        a(f"v_xor_b32 v{LX+1}, 64, v{LX}"); a(f"v_add_u32 v{LX+2}, {2*15360}, v{LX}"); a(f"v_add_u32 v{LX+3}, {3*15360}, v{LX+1}"); a(f"v_add_u32 v{LX+1}, 15360, v{LX+1}")
        a("s_waitcnt lgkmcnt(0)"); srd(a, sXS, pX, 4194304)
    else:
        if XOUT: srd(a, sXS, pOUT, 4194304)
        else: srd(a, sXS, pWS, WS_SIZE); a(f"s_add_u32 s{s}, s{s}, {XF}")
        a(f"s_mov_b32 s{sXSH}, 12")
        for k in range(4): a(f"v_add_u32 v{LX+k}, s{s}, v{vL16}")
def kstage(a, n):
    a(f"s_add_u32 s{sT[1]}, s{sROT}, {n}")
    a(f"s_and_b32 s{sT[1]}, s{sT[1]}, 15")
    a(f"s_lshl_b32 s{sXO}, s{sT[1]}, s{sXSH}"); a(f"s_mul_i32 s{sWOF}, s{sT[1]}, {WSTEP}")
def dma_w(a, n):
    for i in range(2):
        a(f"s_add_u32 m0, s{sMW}, {WB[n % 3] + i*3072}")
        for seg in range(3): a(f"buffer_load_dwordx4 v{LW+i*3+seg}, {sr(sW)}, s{sWOF} offen offset:{seg*1024} lds")
def dma_x(a, n):
    a(f"s_add_u32 m0, s{sMX}, {XB[n % 3]}")
    for k in range(4): a(f"buffer_load_dwordx4 v{LX+k}, {sr(sXS)}, s{sXO} offen offset:{k*1024}{LDF} lds")
def hot_line(a, v, q, base):
    s = sT[4]
    a(f"s_lshr_b32 s{s}, s{base}, 7"); a(f"s_sub_u32 s{s}, 3, s{s}"); a(f"s_and_b32 s{s}, s{s}, 7"); a(f"s_lshl_b32 s{s}, s{s}, 7")
    a(f"v_and_b32 v{v}, 1, v{q}"); a(f"v_lshlrev_b32 v{v}, 10, v{v}"); a(f"v_lshrrev_b32 v{q}, 1, v{q}"); a(f"v_lshlrev_b32 v{q}, 11, v{q}")
    a(f"v_add3_u32 v{v}, v{v}, v{q}, s{s}")
def hot_setup(a, t):
    s = sT[1]
    a(f"s_lshr_b32 s{s}, s2, 3"); a(f"s_mul_i32 s{s}, s{s}, 12"); a(f"s_sub_u32 s{s+1}, s{sWID}, 4"); a(f"s_mul_i32 s{s+1}, s{s+1}, 3"); a(f"s_add_u32 s{s}, s{s}, s{s+1}")
    a(f"v_mul_u32_u24 v{vHOT+1}, 21846, v{vLANE}"); a(f"v_lshrrev_b32 v{vHOT+1}, 16, v{vHOT+1}")
    a(f"v_mul_u32_u24 v{t}, 3, v{vHOT+1}"); a(f"v_sub_u32 v{t}, v{vLANE}, v{t}"); a(f"v_add_u32 v{t}, s{s}, v{t}")
    hot_line(a, vHOT, t, sW)
    a(f"v_bfe_u32 v{t}, v{vHOT}, 7, 4"); a(f"v_and_b32 v{t}, s{sRM}, v{t}"); a(f"v_add_u32 v{vHOT+1}, v{vHOT+1}, v{t}")
def hot_issue(a, first, count, t):
    s = sT[1]
    a(f"v_add_u32 v{t}, {first}, v{vHOT+1}"); a(f"v_and_b32 v{t}, 15, v{t}")
    a(f"s_mov_b32 s{s}, {WSTEP}"); a(f"v_mad_u32_u24 v{t}, v{t}, s{s}, v{vHOT}")
    a(f"s_mov_b64 exec, {(1 << (3 * count)) - 1}")
    a(f"buffer_load_dword v{vDUM}, v{t}, {sr(sW)}, 0 offen")
    a("s_mov_b64 exec, -1")
def hot_burst(a, t):
    if HOT: hot_setup(a, t); hot_issue(a, 0, HOTD + 1, t)
def hot_slab(t, sd, nw, v):
    s = sT[1]; per = 24 // nw; sh = {8: 3, 4: 2}[nw]
    t(f"s_lshr_b32 s{s}, s2, 3"); t(f"s_lshl_b32 s{s}, s{s}, {sh}"); t(f"s_and_b32 s{s+1}, s{sWID}, {nw-1}"); t(f"s_add_u32 s{s}, s{s}, s{s+1}")
    t(f"s_lshr_b32 s{s+1}, s{s}, {sh+3}"); t(f"s_and_b32 s{s}, s{s}, {8*nw-1}"); t(f"s_mul_i32 s{s}, s{s}, {per*2048}")
    t(f"s_lshr_b32 s{s+2}, s{sd}, 7"); t(f"s_sub_u32 s{s+2}, 3, s{s+2}"); t(f"s_and_b32 s{s+2}, s{s+2}, 7"); t(f"s_and_b32 s{s+3}, s{s+1}, 1"); t(f"s_lshl_b32 s{s+3}, s{s+3}, 3"); t(f"s_add_u32 s{s+2}, s{s+2}, s{s+3}")
    t(f"s_lshr_b32 s{s+1}, s{s+1}, 1"); t(f"s_and_b32 s{s+3}, s{sRB}, 14"); t(f"s_add_u32 s{s+1}, s{s+1}, s{s+3}")
    if SLABJ: t(f"s_add_u32 s{s+1}, s{s+1}, s{s+2}"); t(f"s_and_b32 s{s+1}, s{s+1}, 15")
    t(f"s_mul_i32 s{s+1}, s{s+1}, {WSTEP}"); t(f"s_add_u32 s{s}, s{s}, s{s+1}"); t(f"s_lshl_b32 s{s+2}, s{s+2}, 7"); t(f"s_add_u32 s{s}, s{s}, s{s+2}")
    t(f"v_lshlrev_b32 v{v}, 11, v{vLANE}")
    t(f"s_mov_b64 exec, {(1 << per) - 1}"); t(f"buffer_load_dword v{vDUM}, v{v}, {sr(sd)}, s{s} offen"); t("s_mov_b64 exec, -1")
def w_touch(a, t):
    if not WTOUCH: return
    s = sT[1]
    a(f"s_lshr_b32 s{s}, s2, 3"); a(f"s_lshl_b32 s{s}, s{s}, 2"); a(f"s_add_u32 s{s}, s{s}, s{sWID}"); a(f"s_sub_u32 s{s}, s{s}, 4"); a(f"s_mul_i32 s{s}, s{s}, {2*WTL*128}")
    a(f"s_and_b32 s{s+1}, s{sRB}, 14"); a(f"s_mul_i32 s{s+1}, s{s+1}, {WSTEP}"); a(f"s_add_u32 s{s}, s{s}, s{s+1}")
    a(f"v_lshlrev_b32 v{t}, 7, v{vLANE}"); a(f"v_add_u32 v{t}, s{s}, v{t}"); a(f"v_add_u32 v{t+1}, {WTL*128}, v{t}")
    for k in range(2): a(f"v_subrev_u32 v{t+2}, 6291456, v{t+k}"); a(f"v_min_u32 v{t+k}, v{t+k}, v{t+2}")
    a(f"s_mov_b32 exec_hi, {(1 << (WTL - 32)) - 1}")
    for k in range(2): a(f"buffer_load_dword v{vDUM}, v{t+k}, {sr(sW)}, 0 offen")
    a("s_mov_b64 exec, -1")

class VM:
    def __init__(self, a): self.a = a; self.q = []
    def add(self, tag, n=1): self.q += [tag] * n
    def wait(self, tag, extra=""):
        if tag not in self.q:
            if extra: self.a("s_waitcnt" + extra)
            return
        last = max(i for i, t in enumerate(self.q) if t == tag)
        n = len(self.q) - 1 - last
        assert n <= 63
        self.a(f"s_waitcnt vmcnt({n}){extra}")
        self.q = self.q[last + 1:]

S_, CF, CD, G_, TA = 24, 64, 96, 104, 56
def loader_pre(a):
    s = sT[1]
    a(f"s_lshl_b32 s{s}, s{sL}, 4"); a(f"s_add_u32 s{s}, s{s}, s{sJ}"); a(f"s_lshl_b32 s{s}, s{s}, 9"); a(f"s_add_u32 s{s}, s{s}, {CSFL}"); a(f"v_lshl_add_u32 v{TA+2}, v{vLANE}, 3, s{s}")
    a(f"v_lshlrev_b32 v{TA+4}, 2, v{vLANE}")
    a(f"s_sub_u32 s{s+4}, s{sWID}, 4"); tile_flag(a, TA + 5, SFL, 7, 0, s + 4, 15)
    a(f"v_subrev_u32 v{TA+6}, {SFL - XFL}, v{TA+5}")
    if SWARM:
        a(f"s_lshl_b32 s{s}, s{sRB}, 4"); a(f"s_add_u32 s{s}, s{s}, s{s+4}"); a(f"s_lshl_b32 s{s}, s{s}, 16"); a(f"s_lshl_b32 s{s+1}, s{sJ}, 12"); a(f"s_add_u32 s{s}, s{s}, s{s+1}")
        a(f"s_add_u32 s{s}, s{s}, {RGN + OF}"); a(f"s_add_u32 s44, s{pWS}, s{s}"); a(f"s_addc_u32 s45, s{pWS+1}, 0")
        a(f"s_lshl_b32 s{s}, s2, 2"); a(f"s_add_u32 s{s}, s{s}, s{s+4}"); a(f"s_lshl_b32 s{s}, s{s}, 11"); a(f"s_add_u32 s46, s{sWO}, s{s}"); a(f"s_addc_u32 s47, s{sWO+1}, 0")
    a(f"v_and_b32 v{TA}, 15, v{vLANE}"); a(f"v_lshlrev_b32 v{TA+1}, 4, v{TA}"); a(f"v_lshrrev_b32 v{TA+7}, 4, v{vLANE}"); a(f"v_lshl_add_u32 v{TA+1}, v{TA+7}, 10, v{TA+1}")
    a(f"s_lshl_b32 s{s}, s{s+4}, 7"); a(f"s_add_u32 s{s}, s{s}, {TAB}"); a(f"v_lshrrev_b32 v{TA+7}, 5, v{vLANE}"); a(f"v_lshl_add_u32 v{TA+7}, v{TA}, 1, v{TA+7}"); a(f"v_lshl_add_u32 v{TA+7}, v{TA+7}, 2, s{s}")
    a(f"s_mul_i32 s{s}, s{s+4}, 192"); a(f"s_add_u32 s{s}, s{s}, {TAB+1024}"); a(f"v_add_u32 v{TA+3}, s{s}, v{TA+4}")

def loader(a, cs):
    S, G = S_, G_
    s = sT[1]
    vm = VM(a)
    vm.add(("st", 1))
    items = [(46, i * 128, False) for i in range(16)] + [(44, i * 128, True) for i in range(32)]
    sw = [items[i:i + SWARM] for i in range(0, len(items), SWARM)] if SWARM else []
    assert len(sw) <= 13
    for n in range(17):
        if n:
            if n < 16: vm.wait(("st", n))
            else: a("s_waitcnt lgkmcnt(0)")
            a("s_barrier")
        if n == 16:
            if cs:
                a(f"v_mov_b32 v{vCS1}, v{vCS0}"); a(f"ds_read_b32 v{vCS0}, v{TA+3}")
            break
        if n <= 13:
            kstage(a, n + 2); dma_x(a, n + 2); vm.add(("st", n + 2), 4)
            if n: dma_w(a, n + 2); vm.add(("st", n + 2), 6)
        if cs and SWARM and n < len(sw):
            l = a.newlabel("Lsw")
            for pair, off, only0 in sw[n]:
                if only0 and l: a(f"s_cmp_lg_u32 s{sL}, 0"); a(f"s_cbranch_scc1 {l}"); lab, l = l, None
                a(f"s_load_dwordx2 s[98:99], s[{pair}:{pair+1}], {off + 60}")
            if l is None: a.label(lab)
        if HOT and n == WOHOT:
            a(f"s_lshr_b32 s{s}, s2, 3"); a(f"s_lshl_b32 s{s}, s{s}, 6"); a(f"s_sub_u32 s{s+1}, s{sWID}, 4"); a(f"s_lshl_b32 s{s+1}, s{s+1}, 4"); a(f"s_add_u32 s{s}, s{s}, s{s+1}")
            a(f"v_add_u32 v{S+20}, s{s}, v{vLANE}"); hot_line(a, S + 21, S + 20, sWO)
            a("s_mov_b64 exec, 0xffff"); a(f"buffer_load_dword v{vDUM}, v{S+21}, {sr(sWO)}, 0 offen"); a("s_mov_b64 exec, -1"); vm.add("hot")
        if HOT and n % 4 == 0 and n + HOTD + 1 <= 16:
            hot_issue(a, n + HOTD + 1, 4, S + 21); vm.add("hot")
        if n == 5:
            a(f"buffer_load_dwordx2 {vr(S,2)}, v{TA+5}, {sr(sWS)}, 0 offen sc1"); vm.add("XF")
        if n == 8:
            assert "XF" not in vm.q
            ok = a.newlabel("Lxok")
            if DIAG: a(f"s_mov_b32 s{sT[0]}, -1")
            a.flagtest(S, ok); a.poll(TA + 5, S, False); a.label(ok)
            if DIAG: a(f"s_add_u32 s{sT[0]}, s{sT[0]}, 1"); a(f"s_add_u32 m0, s{sL}, 4"); a(f"v_writelane_b32 v7, s{sT[0]}, m0")
            if cs:
                a(f"v_cmp_ne_u32 vcc, s{sN1}, v{S+1}"); a("s_cmp_eq_u64 vcc, 0"); a(f"s_cselect_b32 s{sFAST}, 1, 0")
                a(f"v_mov_b32 v{S+18}, s{sFAST}"); a(f"v_mov_b32 v{S+19}, {TAB+1792}"); a(f"ds_write_b32 v{S+19}, v{S+18}")
            a(f"s_sub_u32 s{s}, s{sWID}, 4"); a(f"s_lshl_b32 s{s+1}, s{sRB}, 2"); a(f"s_add_u32 s{s+1}, s{s}, s{s+1}"); a(f"s_lshl_b32 s{s+1}, s{s+1}, 12")
            for i in range(4): a(f"buffer_load_dwordx4 {vr(S+4*i,4)}, v{TA+1}, {sr(sWS)}, s{s+1} offen offset:{i*256} sc1")
            vm.add("stats", 4)
        if n == 12 and cs:
            a(f"buffer_load_dwordx2 {vr(S+16,2)}, v{TA+2}, {sr(sWS)}, 0 offen sc1"); vm.add("F")
        if n == 14:
            assert "stats" not in vm.q
            for i in range(4): a(f"v_pk_add_f32 {vr(S+2*i,2)}, {vr(S+2*i,2)}, {vr(S+8+2*i,2)}")
            for i in range(2): a(f"v_pk_add_f32 {vr(S+2*i,2)}, {vr(S+2*i,2)}, {vr(S+4+2*i,2)}")
            a(f"v_permlane32_swap_b32 v{S}, v{S+2}"); a(f"v_permlane32_swap_b32 v{S+1}, v{S+3}")
            a(f"v_pk_add_f32 {vr(S,2)}, {vr(S,2)}, {vr(S+2,2)}")
            a(f"v_mov_b32 v{S+2}, v{S}"); a(f"v_mov_b32 v{S+3}, v{S+1}")
            a(f"v_permlane16_swap_b32 v{S}, v{S+2}"); a(f"v_permlane16_swap_b32 v{S+1}, v{S+3}")
            a(f"v_pk_add_f32 {vr(S,2)}, {vr(S,2)}, {vr(S+2,2)}")
            a(f"v_mul_f32 v{S}, 0xba800000, v{S}"); a(f"v_mul_f32 v{S+1}, 0x3a800000, v{S+1}")
            a(f"v_fma_f32 v{S+1}, -v{S}, v{S}, v{S+1}"); a(f"v_max_f32 v{S+1}, 0, v{S+1}"); a(f"v_add_f32 v{S+1}, 0x3727c5ac, v{S+1}")
            a(f"v_rsq_f32 v{S+1}, v{S+1}"); a(f"v_mul_f32 v{S}, v{S}, v{S+1}")
            a(f"ds_write_b32 v{TA+7}, v{S+1}"); a(f"ds_write_b32 v{TA+7}, v{S} offset:512")
        if n == 13 and cs:
            vm.wait("F")
            ok = a.newlabel("Lcsok")
            if DIAG: a(f"s_mov_b32 s{sT[0]}, -1")
            a.flagtest(S + 16, ok); a.poll(TA + 2, S + 16, False); a.label(ok)
            if DIAG: a(f"s_add_u32 s{sT[0]}, s{sT[0]}, 1"); a(f"s_mov_b32 m0, s{sL}"); a(f"v_writelane_b32 v7, s{sT[0]}, m0")
            a(f"s_sub_u32 s{s}, s{sWID}, 4"); a(f"s_mul_i32 s{s}, s{s}, 192"); a(f"s_lshl_b32 s{s+1}, s{sL}, 4"); a(f"s_add_u32 s{s+1}, s{s+1}, s{sJ}"); a(f"s_mul_i32 s{s+1}, s{s+1}, {16*768}")
            a(f"s_add_u32 s{s}, s{s}, s{s+1}"); a(f"s_add_u32 s{s}, s{s}, {CSP}")
            a(f"v_lshrrev_b32 v{S+22}, 2, v{vLANE}"); a(f"v_mul_u32_u24 v{S+22}, 768, v{S+22}"); a(f"v_and_b32 v{S+23}, 3, v{vLANE}"); a(f"v_lshl_add_u32 v{S+22}, v{S+23}, 4, v{S+22}")
            for i in range(3): a(f"buffer_load_dwordx4 {vr(G+4*i,4)}, v{S+22}, {sr(sWS)}, s{s} offen offset:{i*64} sc1")
            vm.add("G", 3)
        if n == 15 and cs:
            vm.wait("G")
            for rot in (4, 8):
                for i in range(12): a(f"v_add_f32_dpp v{G+i}, v{G+i}, v{G+i} row_ror:{rot} row_mask:0xf bank_mask:0xf")
            for sw in ("16", "32"):
                for i in range(12): a(f"v_mov_b32 v{S+i}, v{G+i}")
                for i in range(12): a(f"v_permlane{sw}_swap_b32 v{G+i}, v{S+i}")
                for i in range(6): a(f"v_pk_add_f32 {vr(G+2*i,2)}, {vr(G+2*i,2)}, {vr(S+2*i,2)}")
            a(f"s_sub_u32 s{s}, s{sWID}, 4"); a(f"s_mul_i32 s{s}, s{s}, 192"); a(f"s_add_u32 s{s}, s{s}, {TAB+1024}"); a(f"v_and_b32 v{S}, 3, v{vLANE}"); a(f"v_lshl_add_u32 v{S}, v{S}, 4, s{s}")
            for i in range(3): a(f"ds_write_b128 v{S}, {vr(G+4*i,4)} offset:{i*64}")
        if n == 14 and not cs:
            for x in ["s_mov_b32 exec_hi, 0xffff", f"ds_write_b32 v{TA+3}, v{vCS1}", "s_mov_b64 exec, -1", f"v_mov_b32 v{vCS1}, v{vCS0}"]: a(x)

def wo_setup(a):
    s = sT[1]
    a(f"s_and_b32 s{s}, s{sWID}, 3"); a(f"s_lshl_b32 s{sWP}, s{s}, 10"); a(f"s_lshr_b32 s{sWH}, s{sWID}, 2")
    a(f"s_lshl_b32 s{sWQ}, s{sWH}, 12"); a(f"s_add_u32 s{sWQ}, s{sWQ}, s{sWP}")
    a(f"s_lshl_b32 s{sWR}, s{sJ}, {17 if G2OWN else 31}"); a(f"s_lshl_b32 s{sWR+1}, s{sWH}, 16"); a(f"s_add_u32 s{sWR+1}, s{sWR+1}, s{sWR}")
    a(f"s_lshl_b32 s{s}, s{s}, 14"); a(f"s_lshl_b32 s{s+1}, s{sJ}, 7"); a(f"s_add_u32 s{s}, s{s}, s{s+1}")
    a(f"v_lshrrev_b32 v{vWO}, 3, v{vLANE}"); a(f"v_lshlrev_b32 v{vWO}, 11, v{vWO}"); a(f"v_add3_u32 v{vWO}, v{vWO}, v{vCH}, s{s}")
def wo_one(step, split=False):
    s = sT[10]
    return [f"s_add_u32 m0, s{sWQ if split else sWP}, {step*4096}", f"s_add_u32 s{s}, s{sWR+1 if split else sWR}, {step*65536}", f"s_and_b32 s{s}, s{s}, 0x1fffff",
            f"buffer_load_dwordx4 v{vWO}, {sr(sWO)}, s{s} offen lds"]
def wo_dma(a, steps):
    for st in steps:
        for x in wo_one(st): a(x)

ACC, FR = 24, 120
AX, AW, BX, BW = 236, 240, 242, 246
def acc(seg, tt): return ACC + (seg * 2 + tt) * 16
xfr = lambda p, tt: FR + p * 20 + tt * 4
wfr = lambda p, seg: FR + p * 20 + 8 + seg * 4
def c_reads(p, ks, segs):
    L = []
    def rx(tt): L.append(f"ds_read_b128 {vr(xfr(p,tt),4)}, v{AX+ks} offset:{tt*4096}")
    def rw(seg):
        for hf in range(2): L.append(f"ds_read_b64_tr_b16 {vr(wfr(p,seg)+2*hf,2)}, v{AW+hf} offset:{ks*6144 + seg*1024}")
    rx(0); rw(segs[0]); rx(1)
    for g in segs[1:]: rw(g)
    return L
def c_step(a, p, segs, nxt, bar=False, extra=(), place=None, init=False):
    order = [(g, tt) for g in segs for tt in range(2)]
    have = 2 + 2 * len(segs)
    need = [3, 4] + [4 + 2 * (1 + (m - 2) // 2) for m in range(2, len(order))]
    if place is None: place = [2] * len(order)
    issued = 0; extra = list(extra)
    bm = min(BARM, len(order) - 1) if bar and bar != "top" else 0
    if bar and bm:
        nr = -(-len(nxt) // (len(order) - bm)); place = [0] * bm + [nr] * (len(order) - bm)
        extra = [[] for _ in range(bm)] + [extra[0]] + [sum(extra[1:], [])] if extra else []
    for m, (seg, tt) in enumerate(order):
        if bar and m >= bm:
            if m == bm: a("s_waitcnt lgkmcnt(0)"); a("s_barrier")
        elif m == 0 or need[m] != need[m-1]: a(f"s_waitcnt lgkmcnt({min(15, have - need[m] + issued)})")
        X, W = vr(xfr(p,tt),4), vr(wfr(p,seg),4)
        A, B = (W, X) if seg < 2 else (X, W)
        a(f"v_mfma_f32_32x32x16_bf16 {vr(acc(seg,tt),16)}, {A}, {B}, {'0' if init else vr(acc(seg,tt),16)}")
        for x in (extra[m] if m < len(extra) else ()): a(x)
        k = place[m] if m + 1 < len(order) else len(nxt)
        for r in nxt[issued:issued + k]: a(r)
        issued = min(len(nxt), issued + k)
def rebase(n):
    xs, ws = (f"s{sSLOT}", f"s{sWOF}") if n is None else (XB[n % 3], WB[n % 3])
    ax = lambda k: f"v_add_u32 v{AX+k}, {xs}, v{BX+k}"
    aw = lambda k: f"v_add_u32 v{AW+k}, {ws}, v{BW+k}"
    return [[ax(0), aw(0), aw(1)], [], [], [ax(1)]], [[], [ax(2)], [], [ax(3)]]
def warm(a, what, lo, cnt, v):
    s = sT[1]
    if what in ("o", "x"):
        a(f"s_lshl_b32 s{s+1}, s{sRB}, {4 if what == 'o' else 2}"); a(f"s_add_u32 s{s}, s{sWID}, s{s+1}"); a(f"s_lshl_b32 s{s}, s{s}, 16")
        a(f"s_lshl_b32 s{s+1}, s{sJ}, 12"); a(f"s_add_u32 s{s}, s{s}, s{s+1}"); a(f"s_add_u32 s{s}, s{s}, {lo*128 + (RGN + OF if what == 'o' else 0)}")
        assert XOUT
    else:
        p, size, per = {"wo": (sWO, 2097152, 16), "woa": (pWOA, 2097152, 16), "wb": (pWB, 6291456, 48), "wob": (pWOB, 2097152, 16)}[what]
        srd(a, 40, p, size)
        a(f"s_lshl_b32 s{s}, s2, 2"); a(f"s_add_u32 s{s}, s{s}, s{sWID}"); a(f"s_mul_i32 s{s}, s{s}, {per*128}"); a(f"s_add_u32 s{s}, s{s}, {lo*128}")
    if what in ("o", "x") and PREW:
        for k in range(cnt // 8): a(f"buffer_store_dwordx4 {vr(XRES,4)}, v{vL16}, {sr({'o': sWS, 'x': sIO}[what])}, s{s} offen offset:{k*1024} sc1")
        return
    a(f"v_lshlrev_b32 v{v}, 7, v{vLANE}")
    a(f"s_mov_b32 exec_lo, {min(0xffffffff, (1 << cnt) - 1)}"); a(f"s_mov_b32 exec_hi, {(1 << max(0, cnt - 32)) - 1}")
    a(f"buffer_load_dword v{vDUM}, v{v}, {sr({'o': sWS, 'x': sIO}.get(what, 40))}, s{s} offen"); a("s_mov_b64 exec, -1")
SLAB = 96 * 1024
HS, HA, HW, HF, HD, HR = 170, 174, 176, 182, 184, 192
sH, sHO, sHS = 79, 38, 34
def slab_setup(a, base, w0):
    s = sT[1]; sw = sT[7]
    a(f"s_sub_u32 s{sw}, s{sWID}, {w0}")
    if SLABJ: a(f"s_add_u32 s{s}, s{sROT}, s{sRB}"); a(f"s_and_b32 s{s}, s{s}, 15"); a(f"s_mul_i32 s{sHO}, s{s}, {WSTEP}")
    else: a(f"s_mul_i32 s{sHO}, s{sRB}, {WSTEP}"); assert RM0 == 0
    a(f"v_lshrrev_b32 v{HW}, 3, v{vLANE}"); a(f"v_mul_u32_u24 v{HW}, 6144, v{HW}"); a(f"v_add_u32 v{HW}, v{HW}, v{vCH}")
    a(f"s_mul_i32 s{s+1}, s{sw}, {16*6144}"); a(f"s_lshl_b32 s{s+2}, s{sJ}, 7"); a(f"s_add_u32 s{s+1}, s{s+1}, s{s+2}"); a(f"v_add_u32 v{HW}, s{s+1}, v{HW}")
    for k in range(1, 6): a(f"v_add_u32 v{HW+k}, {(k//3)*8*6144 + (k%3)*1024}, v{HW}")
    sel_const(a, HS, HR)
    a(f"s_mov_b32 s{s}, s{sw}"); a(f"s_add_u32 s{s+1}, s{s}, 4"); a(f"s_cmp_lt_u32 s{s}, 2"); a(f"s_cselect_b32 s{s+1}, s{s+1}, s{s}")
    for c in range(2):
        a(f"s_and_b32 s{s+2}, s{s+c}, 1"); a(f"s_lshl_b32 s{s+2}, s{s+2}, 6"); a(f"v_xor_b32 v{HA+c}, s{s+2}, v{vTR}")
        a(f"s_lshr_b32 s{s+2}, s{s+c}, 1"); a(f"s_lshl_b32 s{s+2}, s{s+2}, 10"); a(f"s_add_u32 s{s+2}, s{s+2}, {base}"); a(f"v_add_u32 v{HA+c}, s{s+2}, v{HA+c}")
    a(f"s_lshl_b32 s{s+2}, s{sL}, 8"); a(f"s_lshl_b32 s{s+3}, s{sJ}, 4"); a(f"s_add_u32 s{s+2}, s{s+2}, s{s+3}"); a(f"s_add_u32 s{s+2}, s{s+2}, s{sRB}")
    a(f"s_lshl_b32 s{s+3}, s{s+2}, 2"); a(f"s_add_u32 s{s+3}, s{s+3}, s{sw}"); a(f"s_lshl_b32 s{s+3}, s{s+3}, 3"); a(f"s_add_u32 s{s+3}, s{s+3}, {CSFL}"); a(f"v_mov_b32 v{HF}, s{s+3}")
    a(f"s_mul_i32 s{s+2}, s{s+2}, 768"); a(f"s_add_u32 s{s+2}, s{s+2}, {CSP}")
    for c in range(2): a(f"s_lshl_b32 s{sHS+c}, s{s+c}, 7"); a(f"s_add_u32 s{sHS+c}, s{sHS+c}, s{s+2}")
    a(f"v_lshlrev_b32 v{HF+1}, 2, v{vLANE}")
def slab_dma(a, base, w0):
    s = sT[1]
    a(f"s_sub_u32 s{s}, s{sWID}, {w0}"); a(f"s_mul_i32 s{s}, s{s}, 6144")
    for i in range(2):
        a(f"s_add_u32 m0, s{s}, {base + i*3072}")
        for seg in range(3): a(f"buffer_load_dwordx4 v{HW+i*3+seg}, {sr(sW)}, s{sHO} offen offset:{seg*1024} lds")
def slab_sums(a):
    for ks in range(4):
        for c in range(2):
            for hf in range(2): a(f"ds_read_b64_tr_b16 {vr(HR+16*c+4*ks+2*hf,2)}, v{HA+c} offset:{(2*ks+hf)*3072}")
    for ks in range(4):
        a(f"s_waitcnt lgkmcnt({12 - 4*ks})")
        for c in range(2): mfma16(a, HD + 4 * c, HS, HR + 16 * c + 4 * ks, "0" if ks == 0 else HD + 4 * c)
    a("s_mov_b32 exec_hi, 0")
    for c in range(2): a(f"buffer_store_dword v{HD+4*c}, v{HF+1}, {sr(sWS)}, s{sHS+c} offen sc1")
    a("s_mov_b64 exec, -1")
def slab_hooks(a):
    s = sT[1]
    L = [a.newlabel("Lsl") for _ in range(4)]
    a(f"s_sub_u32 s{s}, s{sCNT}, s{sH}")
    a(f"s_cmp_lg_u32 s{s}, 0"); a(f"s_cbranch_scc1 {L[0]}")
    slab_dma(a, SLAB, 0); a("s_branch L_cloop")
    a.label(L[0]); a(f"s_cmp_lg_u32 s{s}, 2"); a(f"s_cbranch_scc1 {L[1]}")
    a("s_waitcnt vmcnt(0)"); a("s_branch L_cloop")
    a.label(L[1]); a(f"s_cmp_lg_u32 s{s}, 3"); a(f"s_cbranch_scc1 {L[2]}")
    slab_sums(a); a("s_branch L_cloop")
    a.label(L[2])
    a("s_waitcnt vmcnt(0)"); a.post(HF, HD, True)
    for w in ([] if SWARM else WARM): warm(a, *w, HD + 2)
    a(f"s_cmp_lg_u32 s{sWID}, 1"); a("s_cbranch_scc1 L_cloop")
    srd(a, 40, pDBG, 256)
    a("v_mov_b32 v160, 0"); a("v_mov_b32 v161, 1"); a("s_mov_b64 exec, 1"); a(f"buffer_atomic_add v161, v160, {sr(40)}, 0 offen"); a("s_mov_b64 exec, -1")
    a("s_branch L_cloop")
def c_setup(a, first, zero=True):
    s = sT[1]
    a(f"s_lshr_b32 s{s}, s{sWID}, 1"); a(f"s_lshl_b32 s{s}, s{s}, 13"); a(f"s_and_b32 s{s+1}, s{sWID}, 1"); a(f"s_lshl_b32 s{s+1}, s{s+1}, 6")
    a(f"v_xor_b32 v{BW}, s{s+1}, v{vTR}")
    if first:
        a(f"v_and_b32 v{BX}, 31, v{vLANE}"); a(f"v_bfe_u32 v{BX+1}, v{vLANE}, 1, 3"); a(f"v_lshrrev_b32 v{BX+2}, 5, v{vLANE}"); a(f"v_xor_b32 v{BX+1}, v{BX+1}, v{BX+2}")
        a(f"v_lshlrev_b32 v{BX}, 7, v{BX}"); a(f"v_lshlrev_b32 v{BX+1}, 4, v{BX+1}"); a(f"v_add3_u32 v{BX}, v{BX}, v{BX+1}, s{s}")
        a(f"v_mul_u32_u24 v{BX+2}, {3072 - 512}, v{BX+2}"); a(f"v_add_u32 v{BW}, v{BW}, v{BX+2}"); a(f"v_add_u32 v{BW+1}, 512, v{BW}")
        for k in range(1, 4): a(f"v_xor_b32 v{BX+k}, {32*k}, v{BX}")
    else:
        a(f"v_add_u32 v{BX}, s{s}, v{vL16}"); a(f"v_add_u32 v{BW+1}, 3072, v{BW}")
        for k in range(1, 4): a(f"v_add_u32 v{BX+k}, {1024*k}, v{BX}")
    T0, T1, T2, MD = 250, 251, 252, 253
    for x in [f"s_lshr_b32 s{s}, s{sWID}, 1", f"s_lshl_b32 s{s}, s{s}, 8", f"s_add_u32 s{s}, s{s}, {TAB}",
          f"v_and_b32 v{T0}, 31, v{vLANE}", f"v_lshrrev_b32 v{T1}, 5, v{vLANE}", f"v_lshlrev_b32 v{T1}, 4, v{T1}",
          f"s_and_b32 s{s+1}, s{sWID}, 1", f"s_lshl_b32 s{s+1}, s{s+1}, 7", f"s_add_u32 s{s+1}, s{s+1}, {TAB+1024}",
          f"v_lshl_add_u32 v{T2}, v{T0}, 2, s{s+1}", f"v_lshl_add_u32 v{T0}, v{T0}, 2, s{s}",
          f"v_add_u32 v{MI}, s{s+1}, v{T1}", f"v_add_u32 v{MI+1}, s{s}, v{T1}", f"v_mov_b32 v{MD}, {TAB+1792}"]: a(x)
    a(f"s_mov_b32 s{sMX}, 0")
    a(f"s_mov_b32 s{sCNT}, 0"); a(f"s_mov_b32 s{sSLOT}, {XB[0]}"); a(f"s_mov_b32 s{sWOF}, {WB[0]}")
    for k in range(4): a(f"v_add_u32 v{AX+k}, {XB[0]}, v{BX+k}")
    for k in range(2): a(f"v_add_u32 v{AW+k}, {WB[0]}, v{BW+k}")
    if zero:
        for r in range(ACC, ACC + 96): a(f"v_mov_b32 v{r}, 0")
def c_own_entry(a):
    x_stats(a, 160)
    a("s_waitcnt vmcnt(0)"); a.post(166, 168, False); a(f"v_add_u32 v166, {SFL - XFL}, v166")
    stats_store(a, "", 160)
    for r in range(ACC, ACC + 96): a(f"v_mov_b32 v{r}, 0")
    a("s_waitcnt vmcnt(0) lgkmcnt(0)"); a.post(166, 168, False)
    a("s_branch L_cgo")
def consumer(a):
    s = sT[1]
    ALL, KVs, Qs = (0, 1, 2), (1, 2), (0,)
    P6 = [2, 2, 2, 2, 0, 0]
    a("s_barrier")
    a.stamp("c_g1start")
    if a.stamps and TRACE: a("s_memrealtime s[92:93]" if RT else "s_memtime s[92:93]")
    for r in c_reads(0, 0, ALL): a(r)
    r1, r2 = rebase(None)
    a.label("L_cloop")
    nslot = [f"s_add_u32 s{sSLOT}, s{sSLOT}, 16384", f"s_cmp_gt_u32 s{sSLOT}, {XB[2]}", f"s_cselect_b32 s{sSLOT}, {XB[0]}, s{sSLOT}"]
    nw = [[f"s_add_u32 s{sWOF}, s{sWOF}, 24576", f"s_cmp_eq_u32 s{sWOF}, {WB[2] + 24576}", f"s_cselect_b32 s{sWOF}, {WB[0]}, s{sWOF}"],
          [f"s_cmp_eq_u32 s{sWOF}, {WB[0] + 24576}", f"s_cselect_b32 s{sWOF}, {WB[1]}, s{sWOF}"]]
    c_step(a, 0, ALL, c_reads(1, 1, ALL), place=P6, extra=r2 + [nslot])
    c_step(a, 1, ALL, c_reads(0, 2, ALL), place=P6, extra=[[], [], [], []] + nw); c_step(a, 0, ALL, c_reads(1, 3, ALL), place=P6)
    a(f"s_cmp_eq_u32 s{sCNT}, 12"); a("s_cbranch_scc1 L_ctail")
    c_step(a, 1, ALL, c_reads(0, 0, ALL), bar=True, place=P6, extra=r1)
    def trace(idx):
        if not (a.stamps and TRACE): return
        a(f"s_sub_u32 s68, s92, s{80 if RT else sT0}"); a("s_memrealtime s[92:93]" if RT else "s_memtime s[92:93]")
        a(f"s_lshl_b32 s69, s{sL}, 4"); a(f"s_add_u32 m0, s69, {idx}"); a("v_writelane_b32 v7, s68, m0")
    trace(f"s{sCNT}")
    a(f"s_add_u32 s{sCNT}, s{sCNT}, 1")
    a(f"s_bitcmp1_b32 s{sMX}, s{sCNT}"); a("s_cbranch_scc0 L_cloop")
    slab_hooks(a)
    a.label("L_ctail")
    CQ, CK, VA, QAB = 170, 186, 202, 160
    AB, CV, T0, T1, T2, MD, TM = 164, 168, 250, 251, 252, 253, 120
    r1, r2 = rebase(13)
    c_step(a, 1, ALL, c_reads(0, 0, KVs), bar=True, place=P6, extra=r1)
    trace(12)
    vtab = lambda tt: [f"ds_read_b128 {vr(VA+ab*16+4*g,4)}, v{MI+1} offset:{ab*512 + tt*128 + g*32}" for g in range(4) for ab in range(2)]
    tr = []
    for tt in range(2):
        tr.append(f"ds_read_b32 v{AB+2*tt}, v{T0} offset:{tt*128}"); tr.append(f"ds_read_b32 v{AB+2*tt+1}, v{T0} offset:{512+tt*128}")
    for g in range(4): tr.append(f"ds_read_b128 {vr(CK+4*g,4)}, v{MI} offset:{256+g*32}")
    tr.append(f"ds_read_b32 v{CV}, v{T2} offset:512"); tr.append(f"ds_read_b32 v{MD}, v{MD}")
    tr += vtab(1)
    for g in range(4): tr.append(f"ds_read_b128 {vr(CQ+4*g,4)}, v{MI} offset:{g*32}")
    for n in (13, 14, 15):
        c_step(a, 0, KVs, c_reads(1, 1, KVs), extra=r2); c_step(a, 1, KVs, c_reads(0, 2, KVs)); c_step(a, 0, KVs, c_reads(1, 3, KVs))
        r1, r2 = rebase(n + 1 if n < 15 else 13)
        if n < 15: c_step(a, 1, KVs, c_reads(0, 0, KVs), bar="top" if BARM > 1 else True, extra=r1)
        else: c_step(a, 1, KVs, tr, bar="top", place=[6, 6, 5, 5], extra=r1)
        trace(n)
    a.stamp("c_g1kv")
    a(f"s_lshr_b32 s{s}, s{sWID}, 1"); a(f"s_lshl_b32 s{s}, s{s}, 14"); a(f"s_and_b32 s{s+1}, s{sWID}, 1"); a(f"s_lshl_b32 s{s+1}, s{s+1}, 12"); a(f"s_add_u32 s{s}, s{s}, s{s+1}")
    a(f"s_add_u32 s{sSLOT}, s{s}, s{sOWN}")
    a(f"s_lshl_b32 s{s+1}, s{sJ}, s{sKSH}"); a(f"s_add_u32 s{s}, s{s}, s{s+1}"); a(f"s_lshl_b32 s{s+1}, s{sRB}, 20"); a(f"s_add_u32 s{s}, s{s}, s{s+1}")
    a(f"s_add_u32 s{s}, s{s}, s{sLK}"); a(f"s_add_u32 s{s+1}, s{s}, 8192")
    a(f"s_and_b32 s{s+2}, s{sL}, 1"); a(f"s_lshl_b32 s{s+2}, s{s+2}, 30"); a(f"v_add_u32 v{T0}, s{s+2}, v{vL16}")
    a(f"s_cmp_ge_u32 s{sWID}, 2"); a(f"s_cselect_b32 s{s+2}, 0, s{s+2}"); a(f"v_add_u32 v{T1}, s{s+2}, v{vL16}")
    for x in r2[1] + r2[3]: a(x)
    a("s_waitcnt lgkmcnt(0)")
    l = a.newlabel("Lmd"); a(f"s_cmp_ge_u32 s{sL}, 2"); a(f"s_cbranch_scc1 {l}"); a(f"v_readfirstlane_b32 s{sFAST}, v{MD}"); a.label(l)
    def qk(seg, tt, ab, cs):
        r = acc(seg, tt)
        for p in range(8):
            t = TM + 2 * (p % 4)
            a(f"v_pk_mul_f32 {vr(t,2)}, {vr(cs+2*p,2)}, {vr(ab,2)} op_sel:[0,1] op_sel_hi:[1,1]")
            a(f"v_pk_fma_f32 {vr(t,2)}, {vr(r+2*p,2)}, {vr(ab,2)}, {vr(t,2)} op_sel_hi:[1,0,1]")
            a(f"v_cvt_pk_bf16_f32 v{r+p}, v{t}, v{t+1}")
    def vv(tt):
        r = acc(2, tt)
        for p in range(8):
            t = TM + 2 * (p % 4)
            a(f"v_pk_mul_f32 {vr(t,2)}, {vr(VA+16+2*p,2)}, {vr(CV,2)} op_sel_hi:[1,0]")
            a(f"v_pk_fma_f32 {vr(t,2)}, {vr(r+2*p,2)}, {vr(VA+2*p,2)}, {vr(t,2)}")
            a(f"v_cvt_pk_bf16_f32 v{r+p}, v{t}, v{t+1}")
    def out(seg, tt):
        for f in range(2): a(f"buffer_store_dwordx4 {vr(acc(seg,tt)+4*f,4)}, v{T1 if tt else T0}, {sr(sWS)}, s{s+tt} offen offset:{(seg - 1) * 2048 + f * 1024} sc1")
    qk(1, 1, AB + 2, CK); out(1, 1)
    vv(1)
    for x in vtab(0): a(x)
    out(2, 1)
    qk(1, 0, AB, CK); out(1, 0)
    a("s_waitcnt lgkmcnt(0)")
    qb = lambda i: FR + 12 * ((i + 1) % 3)
    def qrd(i):
        b, ks = qb(i), i % 4
        return [f"ds_read_b128 {vr(b,4)}, v{AX+ks}", f"ds_read_b64_tr_b16 {vr(b+8,2)}, v{AW} offset:{ks*6144}", f"ds_read_b64_tr_b16 {vr(b+10,2)}, v{AW+1} offset:{ks*6144}",
                f"ds_read_b128 {vr(b+4,4)}, v{AX+ks} offset:4096"]
    for x in qrd(0) + qrd(1): a(x)
    vv(0); out(2, 0)
    a.stamp("c_g1epi")
    kv_flag(a, T2, 0, 0)
    a(f"s_mov_b32 s{s+2}, {QSCALE}")
    for k in range(4): a(f"v_mul_f32 v{QAB+k}, s{s+2}, v{AB+k}")
    a(f"v_add_u32 v{T0}, s{sSLOT}, v{vL16}")
    a(f"s_xor_b32 s{s+1}, s{sWID}, 2"); a(f"s_lshl_b32 s{s+1}, s{s+1}, 10"); a(f"s_add_u32 s{s+1}, s{s+1}, {QOFF}"); a(f"v_add_u32 v{T1}, s{s+1}, v{vL16}")
    for i in range(12):
        b = qb(i); R = qrd(i + 2) if i + 2 < 12 else []
        if i == QPOST: a("s_waitcnt vmcnt(0)"); a.post(T2, MI + 6, True); a.stamp("c_g1post")
        a(f"s_waitcnt lgkmcnt({4 if i < 11 else 0})")
        if i == 11: a("s_barrier")
        mfma32(a, acc(0, 0), b + 8, b, acc(0, 0))
        if (i + 2) % 4 == 0 and R:
            r1, r2 = rebase(13 + (i + 2) // 4)
            for x in r1[0]: a(x)
        for x in R[:2]: a(x)
        mfma32(a, acc(0, 1), b + 8, b + 4, acc(0, 1))
        for x in R[2:]: a(x)
        if (i + 2) % 4 == 0 and R:
            for x in r1[3] + r2[1] + r2[3]: a(x)
    TM = 140
    for seg in (1, 2):
        for tt in range(2):
            for f in range(2): a(f"ds_write_b128 v{T0}, {vr(acc(seg,tt)+4*f,4)} offset:{tt*8192 + (seg - 1) * 2048 + f * 1024}")
    a.stamp("c_g1end")
    qk(0, 1, QAB + 2, CQ)
    for f in range(2): a(f"ds_write_b128 v{T1}, {vr(acc(0,1)+4*f,4)} offset:{f*4096}")
    qk(0, 0, QAB, CQ)

Q, S0, KF, BD, BO, NM, SEL, OA, LS, MI = 24, 32, 176, 184, 200, 216, 224, 228, 244, 248
def att_common(a):
    s = sT[1]
    a(f"s_bfe_u32 s{s}, s{sWID}, 0x10001"); a(f"s_xor_b32 s{s}, s{s}, s{sWH}"); a(f"s_lshl_b32 s{s}, s{s}, 1"); a(f"s_add_u32 s{sCNT}, s{s}, s{sWH}")
    a(f"s_lshl_b32 s{s}, s{sCNT}, 13"); a(f"s_and_b32 s{s+1}, s{sWID}, 1"); a(f"s_lshl_b32 s{s+2}, s{s+1}, 12"); a(f"s_add_u32 s{sSLOT}, s{s}, s{s+2}")
    a(f"s_lshl_b32 s{s}, s{sRB}, 4"); a(f"s_add_u32 s{s}, s{s}, s{sCNT}"); a(f"s_lshl_b32 s{s}, s{s}, 16"); a(f"s_lshl_b32 s{s+2}, s{sJ}, 12"); a(f"s_add_u32 s{s}, s{s}, s{s+2}")
    a(f"s_lshl_b32 s{s+1}, s{s+1}, 11"); a(f"s_add_u32 s{s}, s{s}, s{s+1}"); a(f"s_add_u32 s{sXO}, s{s}, {RGN + OF}")
    sel_const(a, SEL, MI + 2)
    a(f"v_and_b32 v{MI+2}, 31, v{vLANE}"); a(f"v_lshrrev_b32 v{MI+3}, 5, v{vLANE}"); a(f"v_lshlrev_b32 v{MI+3}, 2, v{MI+3}"); a(f"v_sub_u32 v{MI+2}, v{MI+2}, v{MI+3}")
def kv_flag(a, v, back, lanes):
    s = sT[1]
    a(f"s_lshl_b32 s{s}, s{sJ}, 4"); a(f"s_add_u32 s{s}, s{s}, s{sRB}")
    if back: a(f"s_sub_u32 s{s}, s{s}, {back}")
    a(f"s_lshl_b32 s{s+4}, s{s}, 7"); a(f"s_lshl_b32 s{s+1}, s{sL}, 15"); a(f"s_add_u32 s{s+4}, s{s+4}, s{s+1}"); a(f"s_add_u32 s{s+4}, s{s+4}, {KVFL}")
    if lanes == "all4": a(f"v_and_b32 v{v}, 3, v{vLANE}"); a(f"v_lshl_add_u32 v{v}, v{v}, 3, s{s+4}")
    else:
        a(f"s_lshl_b32 s{s+1}, s{sWID}, 3"); a(f"s_add_u32 s{s+4}, s{s+4}, s{s+1}")
        if lanes: a(f"s_add_u32 s{s+4}, s{s+4}, {lanes*8}")
        a(f"v_mov_b32 v{v}, s{s+4}")
    a(f"s_and_b32 s{s}, s{s}, 15"); a(f"s_lshl_b32 s{s}, s{s}, 20"); a(f"s_lshl_b32 s{s+1}, s{sJ}, s{sKSH}"); a(f"s_add_u32 s{s}, s{s}, s{s+1}"); a(f"s_add_u32 s{s}, s{s}, s{sLK}")
def masks_A(a):
    s = sT[1]
    a(f"s_mov_b32 s{s}, 0xffff")
    for r in range(16):
        kk = 8 * (r >> 2) + (r & 3)
        a(f"v_subrev_u32 v{BO+r}, {kk}, v{MI+2}"); a(f"v_ashrrev_i32 v{BO+r}, 31, v{BO+r}")
    for r in range(16): a(f"v_and_b32 v{BD+r}, {BIG}, v{BO+r}"); a(f"v_xor_b32 v{BO+r}, {BIG}, v{BD+r}")
def masks_B(a):
    s = sT[1]
    a(f"s_mov_b32 s{s}, 0xffff")
    def bias(d, off):
        a(f"v_add_u32 v{d}, {off & 0xffffffff if off < -16 else off}, v{MI+2}"); a(f"v_and_b32 v{d}, 0xfffffff1, v{d}"); a(f"v_min_u32 v{d}, 1, v{d}")
        a(f"v_lshlrev_b32 v{d}, 31, v{d}"); a(f"v_ashrrev_i32 v{d}, 3, v{d}")
    for r in range(16):
        kk = 8 * (r >> 2) + (r & 3)
        bias(BD + r, -kk)
        if r >= 8: bias(BO + r, 32 - kk)
        else: a(f"v_mov_b32 v{BO+r}, {BIG}")
    for p in range(4, 8):
        a(f"v_ashrrev_i32 v{MI+4}, 31, v{BO+2*p}"); a(f"v_ashrrev_i32 v{MI+5}, 31, v{BO+2*p+1}")
        a(f"v_bfi_b32 v{NM+p}, s{s}, v{MI+4}, v{MI+5}"); a(f"v_not_b32 v{NM+p}, v{NM+p}")
def rowmax_finish(a, m, t):
    a(f"v_mov_b32 v{t}, v{m}"); a(f"v_permlane32_swap_b32 v{m}, v{t}"); a(f"v_max_f32 v{m}, v{m}, v{t}")
    a(f"v_sub_f32 v{m}, 0, v{m}")
def exp_tile(a, r, m, n=8):
    for p in range(n):
        a(f"v_pk_add_f32 {vr(r+2*p,2)}, {vr(r+2*p,2)}, {vr(m,2)} op_sel_hi:[1,0]")
    for p in range(n):
        a(f"v_exp_f32 v{r+2*p}, v{r+2*p}"); a(f"v_exp_f32 v{r+2*p+1}, v{r+2*p+1}")
        if p: a(f"v_cvt_pk_bf16_f32 v{r+p-1}, v{r+2*p-2}, v{r+2*p-1}")
    a(f"v_cvt_pk_bf16_f32 v{r+n-1}, v{r+2*n-2}, v{r+2*n-1}")
def att_finish(a):
    a(f"v_rcp_f32 v{MI+2}, v{LS}")
    for p in range(8): a(f"v_pk_mul_f32 {vr(OA+2*p,2)}, {vr(OA+2*p,2)}, {vr(MI+2,2)} op_sel_hi:[1,0]")
    for p in range(8): a(f"v_cvt_pk_bf16_f32 v{OA+p}, v{OA+2*p}, v{OA+2*p+1}")
    if WT0 & 1: a.stores([f"buffer_store_dwordx4 {vr(OA+4*f,4)}, v{vL16}, {sr(sWS)}, s{sXO} offen offset:{f*1024}" for f in range(2)])
    else:
        for f in range(2): a(f"buffer_store_dwordx4 {vr(OA+4*f,4)}, v{vL16}, {sr(sWS)}, s{sXO} offen offset:{f*1024}{STF}")
    a(f"s_lshl_b32 s{sT[5]}, s{sJ}, 1"); a(f"s_and_b32 s{sT[6]}, s{sWID}, 1"); a(f"s_add_u32 s{sT[5]}, s{sT[5]}, s{sT[6]}")
    tile_flag(a, MI, OFL, 8, 0, sCNT, f"s{sT[5]}")

def attention_A_exact(a):
    St = lambda u: S0 + 16 * u
    s = sT[1]; M = MI + 4
    a(f"s_lshl_b32 s{s+2}, s{sRB}, 2"); a(f"s_add_u32 s{s+2}, s{s+2}, s{sCNT}")
    a(f"s_lshl_b32 s{s}, s{sJ}, 15"); a(f"s_add_u32 s{s}, s{s}, s{sLK}"); a(f"s_and_b32 s{s+1}, s{sWID}, 1"); a(f"s_lshl_b32 s{s+1}, s{s+1}, 12")
    a(f"s_add_u32 s{s}, s{s}, s{s+1}"); a(f"v_add_u32 v{MI}, s{s}, v{vL16}")
    def ld(dst, u, f):
        a(f"s_add_i32 s{s}, s{s+2}, {u-8}"); a(f"s_max_i32 s{s}, s{s}, 0")
        a(f"s_lshr_b32 s{s+1}, s{s}, 2"); a(f"s_lshl_b32 s{s+1}, s{s+1}, 20"); a(f"s_and_b32 s{s}, s{s}, 3"); a(f"s_lshl_b32 s{s}, s{s}, 13"); a(f"s_add_u32 s{s}, s{s}, s{s+1}")
        for k in range(2): a(f"buffer_load_dwordx4 {vr(dst+4*k,4)}, v{MI}, {sr(sWS)}, s{s} offen offset:{(f+k)*1024} sc1")
    for u in range(9):
        ld(KF, u, 0); a("s_waitcnt vmcnt(0)")
        mfma32(a, St(u), KF, Q, BD if u == 8 else BO if u == 0 else "0"); mfma32(a, St(u), KF + 4, Q + 4, St(u))
        a("s_nop 7")
    fx = a.newlabel("Lfix")
    for u in range(8):
        a(f"s_cmp_ge_u32 s{s+2}, {8-u}"); a(f"s_cbranch_scc1 {fx}")
        for r in range(16): a(f"v_mov_b32 v{St(u)+r}, {BIG}")
    a.label(fx)
    a(f"v_max_f32 v{M}, v{St(0)}, v{St(0)+1}")
    for k in range(2, 144, 2): a(f"v_max3_f32 v{M}, v{M}, v{S0+k}, v{S0+k+1}")
    rowmax_finish(a, M, M + 1)
    for u in range(9):
        ld(KF, u, 2)
        exp_tile(a, St(u), M)
        a("s_waitcnt vmcnt(0)")
        mfma32(a, OA, KF, St(u), OA if u else "0"); mfma16(a, LS, SEL, St(u), LS if u else "0"); mfma32(a, OA, KF + 4, St(u) + 4, OA); mfma16(a, LS, SEL, St(u) + 4, LS)
        a("s_nop 7")

def fetch(a, back, base, attempt=False):
    s = sT[1]
    nf = a.newlabel("Lnofetch")
    if attempt: a(f"s_mov_b32 s{sMX}, 0")
    a(f"s_cmp_lt_u32 s{sRB}, {back}"); a(f"s_cbranch_scc1 {nf}")
    kv_flag(a, MI, back, "all4")
    a(f"s_andn2_b32 s{s+1}, 1, s{sWID}"); a(f"s_lshl_b32 s{s+1}, s{s+1}, 13")
    a(f"s_add_u32 s{s}, s{s}, s{s+1}"); a(f"v_add_u32 v{MI+1}, s{s}, v{vL16}")
    if attempt:
        ok = a.newlabel("Ltry")
        a(f"buffer_load_dwordx2 {vr(MI+4,2)}, v{MI}, {sr(sWS)}, 0 offen sc1"); a("s_waitcnt vmcnt(0)")
        a.flagtest(MI + 4, ok); a(f"s_branch {nf}"); a.label(ok)
        a(f"s_mov_b32 s{sMX}, 1")
    else: a.poll2(MI, 112, 116)
    for o in (20480, 16384, 4096, 0):
        a(f"s_add_u32 m0, s{s+1}, {base + o}"); a(f"s_mov_b32 s{s}, {o}")
        for k in range(4): a(f"buffer_load_dwordx4 v{MI+1}, {sr(sWS)}, s{s} offen offset:{k*1024} sc1 lds")
    a.label(nf)

def attention_A(a):
    SB_, PB, KB, VB = 32, 64, 80, 96
    Sx = lambda k: SB_ + 16 * (k & 1); Px = lambda k: PB + 8 * (k & 1); Kx = lambda k: KB + 8 * (k & 1); Vx = lambda k: VB + 8 * (k & 1)
    s = sT[1]
    AD = MI
    def rd(dst, off): return [f"ds_read_b128 {vr(dst,4)}, v{AD} offset:{off}", f"ds_read_b128 {vr(dst+4,4)}, v{AD} offset:{off+1024}"]
    def smf(k, C): return [f"v_mfma_f32_32x32x16_bf16 {vr(Sx(k),16)}, {vr(Kx(k),4)}, {vr(Q,4)}, {C}", f"v_mfma_f32_32x32x16_bf16 {vr(Sx(k),16)}, {vr(Kx(k)+4,4)}, {vr(Q+4,4)}, {vr(Sx(k),16)}"]
    def pv(k):
        L = [f"v_mfma_f32_32x32x16_bf16 {vr(OA,16)}, {vr(Vx(k),4)}, {vr(Px(k),4)}, {vr(OA,16)}", f"v_mfma_f32_16x16x32_bf16 {vr(LS,4)}, {vr(SEL,4)}, {vr(Px(k),4)}, {vr(LS,4)}",
             f"v_mfma_f32_32x32x16_bf16 {vr(OA,16)}, {vr(Vx(k)+4,4)}, {vr(Px(k)+4,4)}, {vr(OA,16)}", f"v_mfma_f32_16x16x32_bf16 {vr(LS,4)}, {vr(SEL,4)}, {vr(Px(k)+4,4)}, {vr(LS,4)}"]
        if DOTSUM:
            for h in range(2): L[2 * h + 1] = "\n".join(f"v_dot2_f32_bf16 v{LS + (i & 1)}, v{Px(k) + 4*h + i}, s{sMW}, v{LS + (i & 1)}" for i in range(4))
        return L
    mode = {"remote": False}
    def rdk(dst, k, o):
        if mode["remote"] and k >= 4: return [x.replace(f"v{AD} ", f"v{AD+1} ") for x in rd(dst, (8 - k) * 8192 + o)]
        return rd(dst, (4 - k) * 8192 + o)
    def nextS(k, special):
        if special is None: return smf(k + 1, "0")
        l0, l1 = a.newlabel("Lsp"), a.newlabel("Lsq")
        m0, m1 = smf(k + 1, "0"), smf(k + 1, vr(BO, 16))
        return ["\n".join([f"s_cmp_eq_u32 s{sCNT}, {special}", f"s_cbranch_scc1 {l0}", m0[0], f"s_branch {l1}", f"{l0}:", m1[0], f"{l1}:"]), m0[1]]
    def start(C, pend):
        for x in rdk(Kx(0), 0, 0) + rdk(Kx(1), 1, 0) + rdk(Vx(0), 0, 2048): a(x)
        a("s_waitcnt lgkmcnt(4)")
        for x in C: a(x)
    def body(k, havepv, last, special=None, dma=(), top=None):
        valu = []
        for p in range(8):
            valu += [f"v_exp_f32 v{Sx(k)+2*p}, v{Sx(k)+2*p}", f"v_exp_f32 v{Sx(k)+2*p+1}, v{Sx(k)+2*p+1}"]
            if p: valu.append(f"v_cvt_pk_bf16_f32 v{Px(k)+p-1}, v{Sx(k)+2*p-2}, v{Sx(k)+2*p-1}")
        valu.append(f"v_cvt_pk_bf16_f32 v{Px(k)+7}, v{Sx(k)+14}, v{Sx(k)+15}")
        ins = {}
        P = pv(k - 1) if havepv else []
        if top: top()
        else: a("s_waitcnt lgkmcnt(2)")
        if not last:
            S2 = nextS(k, special)
            ins[0] = [S2[0]]; ins[SAT2] = [S2[1]]; ins[5] = rdk(Kx(k + 2), k + 2, 0)
        for n, x in zip(PVAT, P): ins.setdefault(n, []).append(x)
        if not last: ins.setdefault(19, []).extend(rdk(Vx(k + 1), k + 1, 2048))
        for n, d in zip((9, 21), dma): ins.setdefault(n, []).extend(d)
        for n, x in enumerate(valu):
            for y in ins.get(n, []): a(y)
            a(x)
    def flush(k, last=False):
        a(f"s_waitcnt lgkmcnt({0 if last else 4})")
        for x in pv(k): a(x)
    l1 = a.wave_if("ge", 6)
    a(f"s_cmp_lg_u32 s{sMX}, 0"); a(f"s_cbranch_scc1 {l1}")
    fetch(a, 1, RB1); a.label(l1)
    for r in range(16): a(f"v_mov_b32 v{OA+r}, 0")
    for r in range(4): a(f"v_mov_b32 v{LS+r}, 0")
    a(f"s_mov_b32 s{sMW}, 0x3f803f80")
    a(f"s_add_u32 s{s}, s{sSLOT}, {OWN_A - 4*8192}"); a(f"v_add_u32 v{AD}, s{s}, v{vL16}")
    start(smf(0, vr(BD, 16)), False)
    p1 = a.newlabel("Lp1done"); ex = [a.newlabel("Lp1x") for _ in range(3)]
    for k in range(4):
        body(k, k > 0, k == 3)
        if k < 3: a(f"s_cmp_eq_u32 s{sCNT}, {k}"); a(f"s_cbranch_scc1 {ex[k]}")
    flush(3, True); a(f"s_branch {p1}")
    for k in range(3):
        a.label(ex[k]); flush(k); a(f"s_branch {p1}")
    a.label(p1)
    a.stamp("A_loc")
    l1 = a.wave_if("ge", 4); l2 = a.wave_if("lt", 6); fetch(a, 2, RB2); a.label(l2); a.label(l1)
    l1 = a.wave_if("ge", 6); a("s_waitcnt vmcnt(0)"); a.label(l1)
    a("s_waitcnt lgkmcnt(0)"); a("s_barrier")
    a.stamp("A_Z1")
    wbz = []
    if HOT and WBZ:
        t = Asm(); lz = a.newlabel("Lwbz"); t(f"s_cmp_lg_u32 s{sL}, 0"); t(f"s_cbranch_scc1 {lz}")
        srd(t, 40, pWB, 6291456); hot_slab(t, 40, 8, 112)
        t.label(lz); wbz = [x.strip() for x in t.lines]
    no1, no2, fin = a.newlabel("Lno1"), a.newlabel("Lno2"), a.newlabel("Lafin")
    m1 = [wo_one((0 if E2Z else 6) + 2 * m, True) for m in range(8 if E2Z else 5)]; m2 = [wo_one(16 + 2 * m, True) if 16 + 2 * m < LATE0 else [] for m in range(4)]
    a(f"s_cmp_eq_u32 s{sRB}, 0"); a(f"s_cbranch_scc1 {no1}")
    a(f"s_and_b32 s{s}, s{sSLOT}, 4096"); a(f"s_add_u32 s{s}, s{s}, {RB1 - 8192}"); a(f"v_add_u32 v{AD}, s{s}, v{vL16}"); a(f"v_add_u32 v{AD+1}, {RB2 - RB1}, v{AD}")
    mode["remote"] = True
    if APRIO: l1 = a.wave_if("ge", 6); a(f"s_setprio {APRIO}"); a.label(l1)
    def z2():
        l1 = a.wave_if("ge", 4); a("s_waitcnt vmcnt(4)"); a.label(l1)
        a.stamp("A_z2a")
        a("s_waitcnt lgkmcnt(2)"); a("s_barrier")
        a.stamp("A_z2b")
    def z3():
        a.stamp("A_z3a")
        a("s_waitcnt lgkmcnt(2)"); a("s_barrier")
    start(smf(0, "0"), False)
    body(0, False, False, dma=m1[0:2]); body(1, True, False, dma=m1[2:4]); body(2, True, False, dma=([m1[4], m1[5] + wbz] if E2Z else [m1[4], wbz]), top=z2)
    body(3, True, False, special=3, dma=m1[6:8])
    a(f"s_cmp_eq_u32 s{sRB}, 1"); a(f"s_cbranch_scc1 {no2}")
    ex = [a.newlabel("Lp3x") for _ in range(3)]
    for k in range(4, 8):
        if k == 4: body(k, True, False, special=2, top=z3, dma=[m2[0] + m2[1], m2[2] + m2[3]])
        elif k < 7: body(k, True, False, special=6 - k)
        else: body(k, True, True)
        if k < 7: a(f"s_cmp_eq_u32 s{sCNT}, {7-k}"); a(f"s_cbranch_scc1 {ex[k-4]}")
    flush(7, True); a(f"s_branch {fin}")
    for k in range(3):
        a.label(ex[k]); flush(4 + k); a(f"s_branch {fin}")
    a.label(no1)
    for d in m1:
        for x in d: a(x)
    a("s_barrier"); a("s_barrier")
    for d in m2:
        for x in d: a(x)
    a(f"s_branch {fin}")
    a.label(no2)
    flush(3)
    a("s_waitcnt lgkmcnt(0)"); a("s_barrier")
    for d in m2:
        for x in d: a(x)
    a.label(fin)
    a.stamp("A_fin")
    if APRIO: a("s_setprio 0")
    a("s_waitcnt lgkmcnt(0)")
    if DOTSUM:
        a(f"v_add_f32 v{LS}, v{LS}, v{LS+1}"); a(f"v_mov_b32 v{LS+1}, v{LS}"); a(f"v_permlane32_swap_b32 v{LS}, v{LS+1}"); a(f"v_add_f32 v{LS}, v{LS}, v{LS+1}")
    ok = a.newlabel("Laok")
    a(f"v_pk_mul_f32 {vr(MI+2,2)}, {vr(OA,2)}, 0")
    for p in range(1, 8): a(f"v_pk_fma_f32 {vr(MI+2,2)}, {vr(OA+2*p,2)}, 0, {vr(MI+2,2)}")
    a(f"v_add_f32 v{MI+2}, v{MI+2}, v{MI+3}"); a(f"v_add_f32 v{MI+2}, v{MI+2}, v{LS}")
    a(f"v_cmp_nle_f32 vcc, 0x21800000, v{MI+2}"); a(f"s_mov_b64 s[{s+1}:{s+2}], vcc"); a(f"v_cmp_nge_f32 vcc, 0x5d800000, v{MI+2}"); a(f"s_or_b64 vcc, vcc, s[{s+1}:{s+2}]")
    if FORCE_EXACT: a("s_mov_b64 vcc, -1")
    a(f"s_cbranch_vccz {ok}")
    attention_A_exact(a)
    a.label(ok)
    att_finish(a)

def halo_B(a):
    VB, KF = S0 + 32, S0 + 48
    s = sT[1]
    none, go = a.newlabel("Lbnone"), a.newlabel("Lbgo")
    a("s_waitcnt lgkmcnt(0)")
    a(f"s_cmp_eq_u32 s{sRB}, 0"); a(f"s_cbranch_scc1 {none}")
    kv_flag(a, MI + 1, 1, 2)
    a(f"s_add_u32 s{s+2}, s{s}, {3*8192}"); a(f"s_add_u32 s{s+2}, s{s+2}, s{sSLOT}")
    a.poll2(MI + 1, 120, 124)
    for d, o in ((KF + 8, 0), (KF + 12, 1024), (VB + 8, 3072)): a(f"buffer_load_dwordx4 {vr(d,4)}, v{vL16}, {sr(sWS)}, s{s+2} offen offset:{o} sc1")
    a(f"s_branch {go}")
    a.label(none)
    for r in list(range(KF + 8, KF + 16)) + list(range(VB + 8, VB + 12)): a(f"v_mov_b32 v{r}, 0")
    a.label(go)

def attention_B(a):
    SO, SP, VB, KF = S0, S0 + 16, S0 + 32, S0 + 48
    M = MI + 4; s = sT[1]
    a(f"s_add_u32 s{s}, s{sSLOT}, {OWN_B - 8192}"); a(f"v_add_u32 v{MI}, s{s}, v{vL16}")
    for d, o in ((KF, 8192), (KF + 4, 8192 + 1024), (VB, 8192 + 2048), (VB + 4, 8192 + 3072)): a(f"ds_read_b128 {vr(d,4)}, v{MI} offset:{o}")
    go = a.newlabel("Lbgo")
    a(f"s_cmp_eq_u32 s{sCNT}, 0"); a(f"s_cbranch_scc1 {go}")
    for d, o in ((KF + 8, 0), (KF + 12, 1024), (VB + 8, 3072)): a(f"ds_read_b128 {vr(d,4)}, v{MI} offset:{o}")
    a.label(go)
    l1 = a.wave_if("lt", 4)
    wo_dma(a, [x for x in BW3 if x < LATE0])
    masks_B(a)
    a(f"s_add_u32 s{s}, s{sRB}, s{sCNT}"); a(f"s_cmp_lg_u32 s{s}, 0"); a(f"s_cbranch_scc1 {go}b")
    for r in range(8, 16): a(f"v_mov_b32 v{BO+r}, {BIG}")
    a.label(go + "b")
    a(f"s_waitcnt vmcnt({len([x for x in BW3 if x < LATE0])})")
    assert sorted(list(BW1) + list(BW2) + list(BW3)) == list(range(0, 6)) + list(range(8, 24))
    a.label(l1)
    a.stamp("B_Z")
    a("s_waitcnt lgkmcnt(0)")
    mfma32(a, SO, KF, Q, BD); mfma32(a, SP, KF + 8, Q, BO); mfma32(a, SO, KF + 4, Q + 4, SO); mfma32(a, SP, KF + 12, Q + 4, SP)
    for r in range(8, 16): a(f"v_max_f32 v{SO+r}, v{SO+r}, v{SP+r}")
    a(f"v_max3_f32 v{M}, v{SO}, v{SO+1}, v{SO+2}"); a(f"v_max3_f32 v{M+1}, v{SO+3}, v{SO+4}, v{SO+5}")
    for k in range(6, 16, 2):
        m = M + ((k >> 1) & 1); a(f"v_max3_f32 v{m}, v{m}, v{SO+k}, v{SO+k+1}")
    a(f"v_max_f32 v{M}, v{M}, v{M+1}")
    rowmax_finish(a, M, M + 1)
    exp_tile(a, SO, M)
    for p in range(4, 8): a(f"v_and_b32 v{SP+p}, v{SO+p}, v{NM+p}"); a(f"v_xor_b32 v{SP+p-4}, v{SO+p}, v{SP+p}")
    mfma32(a, OA, VB, SO, "0"); mfma16(a, LS, SEL, SO, "0"); mfma32(a, OA, VB + 4, SP, OA); mfma16(a, LS, SEL, SO + 4, LS)
    mfma32(a, OA, VB + 8, SP + 4, OA)
    att_finish(a)

A0, OFR, WF2, GA = 24, 56, 120, 152
def gemm2(a):
    s = sT[1]; NB = G2L + 1; ND = G2D + 1
    assert OFR + 4 * ND <= WF2 and WF2 + 8 * NB <= GA
    a(f"s_lshl_b32 s{s}, s{sRB}, 4"); a(f"s_add_u32 s{s}, s{s}, s{sWID}"); a(f"s_lshl_b32 s{s}, s{s}, 16"); a(f"s_add_u32 s{sXO}, s{s}, {RGN + OF}")
    pre = []
    tile_flag(a, GA + 4, OFL, 8, 0, sWID, 31)
    mark = len(a.lines)
    a(f"buffer_load_dwordx2 {vr(GA+6,2)}, v{GA+4}, {sr(sWS)}, 0 offen sc1")
    a(f"v_mov_b32 v{GA}, v{vTR}"); a(f"v_xor_b32 v{GA+1}, 64, v{vTR}"); a(f"v_add_u32 v{GA+2}, 65536, v{GA}"); a(f"v_add_u32 v{GA+3}, 65536, v{GA+1}")
    for p in range(16):
        a(f"v_lshlrev_b32 v{A0+2*p}, 16, v{XRES+p}"); a(f"v_and_b32 v{A0+2*p+1}, 0xffff0000, v{XRES+p}")
    def ld(i):
        if i % 4 == 0: a(f"s_add_u32 s{s+3}, s{sJ}, {i//4}" if G2OWN else f"s_mov_b32 s{s+3}, {i//4}"); a(f"s_and_b32 s{s+3}, s{s+3}, 15"); a(f"s_lshl_b32 s{s+3}, s{s+3}, 12"); a(f"s_add_u32 s{sT[12]}, s{s+3}, s{sXO}")
        a(f"buffer_load_dwordx4 {vr(OFR+4*(i%ND),4)}, v{vL16}, {sr(sWS)}, s{sT[12]} offen offset:{(i%4)*1024}{LDF}")
    def rd(i):
        b = WF2 + 8 * (i % NB); hi = 2 * (i >= 32); o = (i & 31) * 2048
        return [f"ds_read_b64_tr_b16 {vr(b+4*c+2*hf,2)}, v{GA+hi+c} offset:{o + hf*1024}" for c in range(2) for hf in range(2)]
    for i in range(G2L):
        for x in rd(i): a(x)
    st = x_frags(a)
    tile_flag(a, 166, XFL, 7, 1, sWID, f"s{sJ}")
    c_setup(a, False, zero=False)
    a(f"s_lshl_b32 s{s}, s{sWID}, 12"); a(f"s_add_u32 s{s}, s{s}, {XB[0]}"); a(f"v_add_u32 v165, s{s}, v{vL16}")
    NOWN = 4 if G2OWN else 0
    if NOWN:
        t = G(False); a_, a = a, t
        for i in range(NOWN): ld(i)
        a = a_; a.lines[mark:mark] = t.lines
    def step(i, nld):
        b = WF2 + 8 * (i % NB); o = OFR + 4 * (i % ND)
        if G2ST and i in (1, 16, 32, 48): a.stamp(f"c_g2_{i}")
        R = rd(i + G2L) if i + G2L < 64 else []
        a(f"s_waitcnt vmcnt({nld - i - 1}) lgkmcnt({4 * (min(64, i + G2L) - i - 1)})")
        mfma32(a, A0, b, o, A0)
        for x in R[:2]: a(x)
        if i >= NOWN and i + G2D < 64: ld(i + G2D)
        if i == SLB: l1 = a.newlabel("Lnsl"); a(f"s_cmp_lg_u32 s{sL}, 0"); a(f"s_cbranch_scc1 {l1}"); a("s_barrier"); a.label(l1)
        if i == SAT or (SAT < 40 and i == 40): a("s_barrier")
        mfma32(a, A0 + 16, b + 4, o, A0 + 16)
        for x in R[2:]: a(x)
    for i in range(NOWN): step(i, NOWN + 1)
    a("s_waitcnt vmcnt(0)")
    ok = a.newlabel("Look"); a.flagtest(GA + 6, ok); a.poll2(GA + 4, 144, 148); a.label(ok); a.acquire()
    a.stamp("c_R")
    for i in range(NOWN, NOWN + G2D): ld(i)
    for i in range(NOWN, 64): step(i, min(64, i + G2D))
    a.stamp("c_g2end")
    a(f"s_cmp_eq_u32 s{sL}, 3"); a("s_cbranch_scc1 L_final")
    for f in range(4):
        for p in range(4 * f, 4 * f + 4): a(f"v_cvt_pk_bf16_f32 v{XRES+p}, v{A0+2*p}, v{A0+2*p+1}")
        if WT0 & 2: a.stores([st[f]])
        else: a(st[f])
        a(f"ds_write_b128 v165, {vr(XRES+4*f,4)} offset:{f*1024}")

def gen(stamps=False):
    a = G(stamps)
    s = sT[1]
    a("s_cmp_ge_u32 s2, 256"); a("s_cbranch_scc1 L_end")
    if stamps: a(f"s_memtime s[{sT0}:{sT0+1}]"); a("s_mov_b32 s70, -1"); a("s_mov_b32 s82, 0")
    if stamps or DBGT or PH: a("s_memrealtime s[80:81]"); a("s_mov_b32 s94, 0")
    a("s_load_dwordx16 s[48:63], s[0:1], 0"); a("s_load_dwordx2 s[64:65], s[0:1], 64")
    a("v_lshrrev_b32 v1, 6, v0"); a(f"v_readfirstlane_b32 s{sWID}, v1")
    a(f"v_and_b32 v{vLANE}, 63, v0"); a(f"v_lshlrev_b32 v{vL16}, 4, v{vLANE}")
    if CODEPF:
        l1 = a.wave_if("eq", 3)
        a("s_getpc_b64 s[40:41]")
        a.label("L_pc")
        a(f"s_lshr_b32 s{s}, s2, 3"); a(f"s_mul_i32 s{s}, s{s}, {CODEPF * 128}"); a(f"v_lshlrev_b32 v28, 7, v{vLANE}"); a(f"v_add_u32 v28, s{s}, v28")
        a(f"s_mov_b32 s{s}, L_end - L_pc"); a(f"v_min_u32 v28, s{s}, v28")
        a("v_mov_b32 v29, s41"); a("v_add_co_u32 v28, vcc, s40, v28"); a("v_addc_co_u32 v29, vcc, 0, v29, vcc")
        a(f"s_mov_b64 exec, {(1 << CODEPF) - 1}"); a(f"global_load_dword v{vDUM}, v[28:29], off"); a("s_mov_b64 exec, -1")
        a.label(l1)
    a(f"s_and_b32 s{s}, s2, 7"); a(f"s_lshr_b32 s{s+1}, s2, 3"); a(f"s_lshl_b32 s{sRB}, s{s}, 1"); a(f"s_and_b32 s{s}, s{s+1}, 1"); a(f"s_add_u32 s{sRB}, s{sRB}, s{s}")
    a(f"s_lshr_b32 s{sJ}, s{s+1}, 1"); a(f"s_mov_b32 s{sRM}, {RM0}"); a(f"s_and_b32 s{sROT}, s{sJ}, {RM0}")
    a(f"v_bfe_u32 v16, v{vLANE}, 4, 1"); a("v_lshlrev_b32 v16, 2, v16"); a(f"v_and_b32 v17, 7, v{vLANE}"); a("v_xor_b32 v16, v16, v17"); a(f"v_lshlrev_b32 v{vCH}, 4, v16")
    def common():
        srd(a, sWS, pWS, WS_SIZE); a(f"v_mov_b32 v28, {NONCE}")
        a(f"buffer_load_dwordx2 v[26:27], v28, {sr(sWS)}, 0 offen sc1")
        srd(a, sWO, pWOA, 2097152)
        a(f"s_mov_b32 s{sL}, 0"); a(f"s_mov_b32 s{sLK}, {RGN + KVA}"); a(f"s_mov_b32 s{sKSH}, 15"); a(f"s_mov_b32 s{sFAST}, 0"); a(f"s_mov_b32 s{sOWN}, {OWN_A}"); a(f"v_mov_b32 v{vSTAMP}, 0"); a("v_mov_b32 v7, 0")
        a(f"v_lshrrev_b32 v28, 5, v{vLANE}"); a("v_lshlrev_b32 v28, 2, v28"); a(f"v_bfe_u32 v29, v{vLANE}, 2, 2"); a("v_add_u32 v28, v28, v29")
        a(f"v_bfe_u32 v29, v{vLANE}, 4, 1"); a("v_lshlrev_b32 v29, 1, v29"); a(f"v_bfe_u32 v30, v{vLANE}, 1, 1"); a("v_add_u32 v29, v29, v30")
        a("v_bfe_u32 v30, v28, 1, 1"); a("v_lshlrev_b32 v30, 2, v30"); a("v_xor_b32 v29, v29, v30")
        a("v_lshlrev_b32 v28, 7, v28"); a("v_lshlrev_b32 v29, 4, v29"); a(f"v_and_b32 v30, 1, v{vLANE}"); a("v_lshlrev_b32 v30, 3, v30"); a(f"v_add3_u32 v{vTR}, v28, v29, v30")
        wo_setup(a)
        for r in range(HW, HF + 2): a(f"v_mov_b32 v{r}, 0")
    def nonce():
        a(f"v_readfirstlane_b32 s{sN0}, v26"); a(f"v_readfirstlane_b32 s{sN1}, v27")
        a(f"s_add_u32 s{sN0}, s{sN0}, 1"); a(f"s_add_u32 s{sN1}, s{sN1}, 16"); a(f"s_and_b32 s{sN1}, s{sN1}, 0xfffffff0")
        a(f"s_getreg_b32 s{s}, hwreg(HW_REG_XCC_ID, 0, 4)"); a(f"s_or_b32 s{sN1}, s{sN1}, s{s}")
    a(f"s_cmp_lt_u32 s{sWID}, 4"); a("s_cbranch_scc1 L_cstart")
    loader_setup_w(a); loader_setup_x(a, True)
    srd(a, sW, pWA, 6291456)
    def hot0():
        if HOT: hot_setup(a, 28)
        if HOT and HOT0: hot_issue(a, HOT0[0], HOT0[1], 28)
    if HOTF: hot0()
    if HOTX:
        a(f"s_and_b32 s{s}, s2, 7"); a(f"s_lshl_b32 s{s}, s{s}, 9"); a(f"s_lshr_b32 s{s+1}, s2, 3"); a(f"s_lshl_b32 s{s+1}, s{s+1}, 4"); a(f"s_add_u32 s{s}, s{s}, s{s+1}")
        a(f"s_and_b32 s{s+1}, s{sWID}, 3"); a(f"s_lshl_b32 s{s+1}, s{s+1}, 2"); a(f"s_add_u32 s{s}, s{s}, s{s+1}"); a(f"v_add_u32 v28, s{s}, v{vLANE}"); hot_line(a, 29, 28, sXS)
        a("s_mov_b64 exec, 15"); a(f"buffer_load_dword v{vDUM}, v29, {sr(sXS)}, 0 offen"); a("s_mov_b64 exec, -1")
    kstage(a, 0); dma_w(a, 0); dma_x(a, 0)
    common(); srd(a, sIO, pOUT, 4194304)
    if HOTS: hot_slab(a, sW, 4, 28)
    if not HOTF: hot0()
    kstage(a, 1); dma_w(a, 1); kstage(a, 2); dma_w(a, 2); kstage(a, 1); dma_x(a, 1)
    loader_pre(a)
    a(f"s_waitcnt vmcnt({16 + HOTS + (1 if HOT and HOT0 and not HOTF else 0)})"); nonce()
    a("s_barrier")
    a("s_branch L_lbody")
    a.label("L_cstart")
    io_addr(a, 24)
    a("s_waitcnt lgkmcnt(0)")
    srd(a, sIO, pX, 4194304)
    for f in range(4): a(f"buffer_load_dwordx4 {vr(XRES+4*f,4)}, v24, {sr(sIO)}, 0 offen offset:{f*32}")
    common(); srd(a, sW, pWA, 6291456)
    a("s_waitcnt vmcnt(0)")
    nonce(); half_swaps(a)
    x_stats(a, 24); stats_store(a, " sc1", 24)
    srd(a, sIO, pOUT, 4194304)
    a.stamp("c0_x0")
    tile_flag(a, 166, SFL, 7, 0, sWID, f"s{sJ}")
    c_setup(a, True); slab_setup(a, SLAB, 0)
    a(f"s_sub_u32 s{s}, s{sRB}, {PROG}"); a(f"s_max_i32 s{sH}, s{s}, 1"); a(f"s_lshl_b32 s{s}, {1 + 4 + 8 + (1 << POSTD)}, s{sH}"); a(f"s_or_b32 s{sMX}, s{sMX}, s{s}")
    a("s_waitcnt vmcnt(0)"); a.post(166, 168, True)
    a.label("L_cgo")
    consumer(a)
    a("s_branch L_att")
    a.label("L_lbody")
    loader(a, True)
    a("s_branch L_ldone")
    a.label("L_lbody2")
    loader(a, False)
    a.label("L_ldone")
    wo_dma(a, range(24, LATE0))
    att_common(a)
    a(f"s_bitcmp1_b32 s{sL}, 0"); a("s_cbranch_scc1 L_lB")
    masks_A(a)
    a("s_barrier")
    l1 = a.wave_if("ge", 6); fetch(a, 1, RB1, True); a.label(l1)
    a("s_branch L_attA")
    a.label("L_lB")
    masks_B(a)
    a("s_barrier")
    wo_dma(a, BW1)
    a("s_branch L_attB2")
    a.label("L_att")
    att_common(a)
    a(f"s_bitcmp1_b32 s{sL}, 0"); a("s_cbranch_scc1 L_attB")
    def qread():
        a(f"s_add_u32 s{s}, s{sWP}, {QOFF}"); a(f"v_add_u32 v{MI}, s{s}, v{vL16}")
        a(f"ds_read_b128 {vr(Q,4)}, v{MI}"); a(f"ds_read_b128 {vr(Q+4,4)}, v{MI} offset:4096")
    a.label("L_attA")
    a("s_waitcnt lgkmcnt(0)"); a("s_barrier")
    a.stamp("A_Y")
    l1 = a.wave_if("ge", 4); qread(); a.label(l1)
    l1 = a.wave_if("lt", 4); wo_dma(a, [] if E2Z else range(0, 6)); masks_A(a); a.label(l1)
    attention_A(a)
    a.stamp("A_end")
    a("s_branch L_attdone")
    a.label("L_attB")
    if HALOY: l1 = a.wave_if("lt", 2); halo_B(a); a.label(l1)
    a.label("L_attB2")
    a("s_waitcnt lgkmcnt(0)"); a("s_barrier")
    a.stamp("B_Y")
    if not HALOY: l1 = a.wave_if("lt", 2); halo_B(a); a.label(l1)
    l1 = a.wave_if("ge", 4); qread(); wo_dma(a, BW2); a("s_waitcnt lgkmcnt(0)"); wo_dma(a, [6, 7]); a.label(l1)
    attention_B(a)
    a.stamp("B_end")
    a.label("L_attdone")
    a("s_waitcnt vmcnt(0)"); a.post(MI, MI + 4, False, 0 if WT0 & 1 else None)
    a.label("L_P")
    for _ in range(IDLE): a("s_sleep 32")
    a("s_barrier")
    a.stamp("P")
    a(f"s_cmp_ge_u32 s{sWID}, 4"); a("s_cbranch_scc1 L_lnext")
    gemm2(a)
    next_layer(a)
    c_own_entry(a)
    a.label("L_lnext")
    assert LATE0 >= 22 and LATE0 % 2 == 0 and SAT < 40
    wo_dma(a, range(LATE0, 32))
    a(f"s_cmp_eq_u32 s{sL}, 3"); a("s_cbranch_scc1 L_lfinal")
    next_layer(a)
    l1 = a.newlabel("Lnsl"); a(f"s_cmp_lg_u32 s{sL}, 1"); a(f"s_cbranch_scc1 {l1}")
    slab_setup(a, WB[0], 4); slab_dma(a, WB[0], 4)
    if WOBW:
        a(f"s_lshl_b32 s{s}, s2, 2"); a(f"s_add_u32 s{s}, s{s}, s{sWID}"); a(f"s_sub_u32 s{s}, s{s}, 4"); a(f"s_lshl_b32 s{s}, s{s}, 11"); a(f"v_lshlrev_b32 v{S_}, 7, v{vLANE}")
        a("s_mov_b64 exec, 0xffff"); a(f"buffer_load_dword v{vDUM}, v{S_}, {sr(sWO)}, s{s} offen"); a("s_mov_b64 exec, -1")
    a("s_waitcnt vmcnt(0)"); a("s_barrier")
    slab_sums(a)
    a.label(l1)
    hot_burst(a, S_)
    loader_setup_w(a); loader_setup_x(a, False); loader_pre(a)
    a.stamp("ln_pre")
    a("s_barrier")
    a.stamp("ln_S")
    for n in range(3):
        if n and WPACE is not None: a(f"s_waitcnt vmcnt({WPACE})")
        if n == 1:
            assert WPACE == 0
            l1 = a.newlabel("Lnsl"); a(f"s_cmp_lg_u32 s{sL}, 1"); a(f"s_cbranch_scc1 {l1}"); a.post(HF, HD, True); a.label(l1)
        kstage(a, n); dma_w(a, n)
        if SAT < 40 and n == S2AT: a("s_waitcnt vmcnt(6)"); a("s_barrier")
    a.stamp("ln_S2")
    assert W2AT == "T" and SAT >= 24
    a.poll2(TA + 6, S_ + 24, S_ + 28); a.acquire()
    kstage(a, 1); dma_x(a, 1)
    a("s_barrier")
    a(f"s_cmp_ge_u32 s{sL}, 2"); a("s_cbranch_scc1 L_lbody2")
    a("s_branch L_lbody")
    a.label("L_lfinal")
    a("s_barrier")
    a("s_waitcnt vmcnt(0)"); a("s_barrier")
    a("s_branch L_out")
    a.label("L_final")
    io_addr(a, 160)
    for p in range(16): a(f"v_cvt_pk_bf16_f32 v{XRES+p}, v{A0+2*p}, v{A0+2*p+1}")
    half_swaps(a)
    for f in range(4): a(f"buffer_store_dwordx4 {vr(XRES+4*f,4)}, v160, {sr(sIO)}, 0 offen offset:{f*32}")
    a.label("L_out")
    a.stamp("f_end")
    if stamps:
        a("s_waitcnt lgkmcnt(0)"); a(f"s_sub_u32 s68, s82, s{80 if RT else sT0}"); a("s_and_b32 m0, s70, 63"); a(f"v_writelane_b32 v{vSTAMP}, s68, m0")
        a("s_memrealtime s[82:83]"); a("s_waitcnt lgkmcnt(0)"); a(f"v_writelane_b32 v{vSTAMP}, s80, 62"); a(f"v_writelane_b32 v{vSTAMP}, s82, 63")
        a(f"s_lshl_b32 s{s}, s2, 11"); a(f"s_lshl_b32 s{s+1}, s{sWID}, 8"); a(f"s_add_u32 s{s}, s{s}, s{s+1}"); a(f"s_add_u32 s{s}, s{s}, {STAMP}")
        a(f"v_lshlrev_b32 v16, 2, v{vLANE}"); a(f"buffer_store_dword v{vSTAMP}, v16, {sr(sWS)}, s{s} offen")
        if TRACE: a(f"s_add_u32 s{s}, s{s}, {1 << 20}"); a(f"buffer_store_dword v7, v16, {sr(sWS)}, s{s} offen")
    if DBGT:
        srd(a, 40, pDBG, 256)
        a("s_waitcnt vmcnt(0)"); a("s_memrealtime s[82:83]"); a("s_waitcnt lgkmcnt(0)"); a("s_not_b32 s80, s80")
        a("v_mov_b32 v22, 4"); a("v_mov_b32 v24, s82"); a("v_mov_b32 v25, s80"); a("s_mov_b64 exec, 1")
        l1 = a.wave_if("eq", 0)
        a(f"buffer_atomic_umax v24, v22, {sr(40)}, 0 offen"); a(f"buffer_atomic_umax v25, v22, {sr(40)}, 0 offen offset:4")
        a.label(l1); a("s_mov_b64 exec, -1")
    if DBGT >= 2:
        a("s_not_b32 s80, s80")
        if DBGT == 3: a("s_waitcnt vmcnt(0)"); a("s_barrier"); a("buffer_wbl2 sc1"); a("s_waitcnt vmcnt(0)")
        a.label("L_pad"); a("s_memrealtime s[82:83]"); a("s_waitcnt lgkmcnt(0)"); a("s_sub_u32 s82, s82, s80"); a("s_cmp_lt_u32 s82, 20000"); a("s_cbranch_scc1 L_pad")
    if PH:
        if len(PH) > 2: a(f"s_cmp_eq_u32 s2, {PH[2]}"); a("s_cselect_b32 s94, s94, 0")
        a("s_mul_i32 s94, s94, 4"); a("s_add_u32 s94, s94, 20000")
        a.label("L_pad2"); a("s_memrealtime s[82:83]"); a("s_waitcnt lgkmcnt(0)"); a("s_sub_u32 s82, s82, s80"); a("s_cmp_lt_u32 s82, s94"); a("s_cbranch_scc1 L_pad2")
    a(f"s_or_b32 s{s}, s2, s{sWID}"); a(f"s_cmp_lg_u32 s{s}, 0"); a("s_cbranch_scc1 L_end")
    srd(a, 40, pDBG, 256)
    a("v_mov_b32 v22, 0"); a(f"s_mov_b32 s{s}, 0")
    a.label("L_dbgpoll")
    a(f"buffer_load_dword v23, v22, {sr(40)}, 0 offen sc1"); a("s_waitcnt vmcnt(0)")
    a("v_cmp_gt_u32 vcc, 0x100, v23"); a("s_cbranch_vccz L_dbgok")
    a(f"s_add_u32 s{s}, s{s}, 1"); a(f"s_cmp_lt_u32 s{s}, {SPIN}"); a("s_cbranch_scc1 L_dbgpoll")
    a.label("L_dbgok")
    a(f"v_mov_b32 v22, {NONCE}"); a(f"v_mov_b32 v24, s{sN0}"); a(f"v_mov_b32 v25, s{sN1}")
    a("s_mov_b64 exec, 1")
    a(f"buffer_store_dwordx2 v[24:25], v22, {sr(sWS)}, 0 offen sc1")
    a.label("L_end")
    a("s_endpgm")
    body, n = hazard.fix(a.text())
    hdr = open(HERE + "/header.txt").read().rstrip("\n").split("\n")
    hdr.append("; @launch grid=(256,1,1) block=(512,1,1) lds=163840")
    return kernel_file(hdr, [(KNAME, body, 256, 100, 256)]), a.names, n

if __name__ == "__main__":
    for x in sys.argv[2:]:
        if "=" in x: k, v = x.split("="); globals()[k] = eval(v)
    txt, names, n = gen("stamps" in sys.argv)
    open(sys.argv[1], "w").write(txt)
    if names: open(sys.argv[1] + ".names", "w").write("\n".join(names))
    print("lines", txt.count("\n"), "nops inserted", n)
```

```python
import sys, os, struct, math
HERE = os.path.dirname(os.path.abspath(__file__)); sys.path.insert(0, HERE + "/../tools")
from asmlib import *
import hazard

MB = 1 << 20
ST, CSP, FL, RGN, XF, STAMP = 0, 256 * 1024, 640 * 1024, 2 * MB, 18 * MB, 70 * MB
XFL, OFL, CSFL, NONCE, KVFL, SFL = FL, FL + 32768, FL + 98304, FL + 114688, FL + 131072, FL + 262144
OF, KVA = 256 * 1024, 512 * 1024
WS_SIZE = 72 * MB
XB = [48 * 1024, 64 * 1024, 80 * 1024]
WB = [136 * 1024, 0, 24 * 1024]
TAB = 128 * 1024
QOFF = 24 * 1024
OWN_A, OWN_B, RB1, RB2 = 32 * 1024, 128 * 1024, 64 * 1024, 128 * 1024
BIG = 0xF149F2CA
QSCALE = struct.unpack("<I", struct.pack("<f", 32 ** -0.5 * math.log2(math.e)))[0]
WSTEP = 64 * 6144
SPIN = 1 << 18
RT = 0; TRACE = 0; PH = None; SKIP = []; G2ST = 0; FORCE_EXACT = 0; DBGT = 0
G2L = 2; G2D = 12; HOT = 1; HOTD = 4; WTOUCH = 0; WTL = 48; W2AT = 'T'; APRIO = 1; QPOST = 6
BW1 = list(range(0, 6)) + list(range(8, 16)); BW2 = []; BW3 = list(range(16, 24)); LATE0 = 28; G2OWN = 1; POLL2 = 0; E2Z = 1; RM0 = 0; SLABJ = 1; WOHOT = 10; HOTF = 1; HOTX = 0; HOTS = 0; SWARM = 0; SAT = 32; WPACE = 0; IDLE = 0; XOUT = 1;
WARM = [("wo", 0, 16), ("o", 0, 32)]; WBZ = 1
STF = ''; LDF = ' sc1'; PREW = 0; HOT0 = (0, 5); DIAG = 0; WT0 = 0; PROG = 8; POSTD = 4; SLB = 24; DOTSUM = 0; BARM = 1; PVAT = (7, 10, 13, 16); SAT2 = 3; WOBW = 0;
S2AT = 0;  CODEPF = 12; HALOY = 0; OUTF = ''; WBL = 0

sW, sWO, sWS, sIO, sXS = 4, 8, 12, 16, 88
sWID, sRB, sJ, sL, sFAST, sN0, sN1 = 3, 20, 21, 22, 23, 24, 25
sT = list(range(26, 48))
pX, pWA, pWOA, pWB, pWOB, pOUT, pDBG, pWS = 48, 50, 52, 56, 58, 60, 62, 64
sT0 = 66
sLK, sKSH = 72, 73
sCNT, sSLOT, sXO, sWOF, sMX, sMW = 74, 75, 76, 77, 78, 79
sWQ, sWR = 95, 96
sROT, sRM = 98, 99
sXST = 71
sOWN, sWP, sWH, sXSH = 84, 85, 86, 87
vL16, vLANE, vTR, vCH, vWO, vSTAMP = 0, 1, 2, 3, 4, 6
vCS0, vCS1 = 20, 21
XRES = 8
vDUM = 255

def vr(r, n): return f"v[{r}:{r+n-1}]"
def sr(r, n=4): return f"s[{r}:{r+n-1}]"

class G(Asm):
    def __init__(self, stamps):
        super().__init__(); self.stamps = stamps; self.names = []
    def stamp(self, name):
        if PH and name == PH[0]:
            l = self.newlabel("Lph")
            self(f"s_cmp_lg_u32 s{sL}, {PH[1]}"); self(f"s_cbranch_scc1 {l}")
            self("s_memrealtime s[92:93]"); self("s_waitcnt lgkmcnt(0)"); self("s_sub_u32 s94, s92, s80"); self.label(l)
        if not self.stamps or SKIP == 'all' or name in SKIP: return
        self.names.append(name)
        self(f"s_sub_u32 s68, s82, s{80 if RT else sT0}")
        self("s_memrealtime s[82:83]" if RT else "s_memtime s[82:83]")
        self("s_mov_b32 s69, m0"); self("s_mov_b32 m0, s70"); self("s_add_u32 s70, s70, 1"); self(f"v_writelane_b32 v{vSTAMP}, s68, m0"); self("s_mov_b32 m0, s69")
    def wave_if(self, cond, imm):
        l = self.newlabel("Lw")
        self(f"s_cmp_{cond}_u32 s{sWID}, {imm}"); self(f"s_cbranch_scc0 {l}")
        return l
    def stores(self, L):
        if not WT0:
            for x in L: self(x)
            return
        l0, l1 = self.newlabel("Lwt"), self.newlabel("Lwt")
        self(f"s_cmp_eq_u32 s{sL}, 0"); self(f"s_cbranch_scc1 {l0}")
        for x in L: self(x)
        self(f"s_branch {l1}"); self.label(l0)
        for x in L: self(x + " sc1")
        self.label(l1)
    def post(self, vaddr, vt, cross, wt=None):
        self(f"v_mov_b32 v{vt}, s{sN0}"); self(f"v_mov_b32 v{vt+1}, s{sN1}")
        self("s_mov_b64 exec, 1")
        if cross:
            self(f"buffer_store_dwordx2 {vr(vt,2)}, v{vaddr}, {sr(sWS)}, 0 offen sc1")
        else:
            sl, dn, w0 = self.newlabel("Lslow"), self.newlabel("Lpd"), self.newlabel("Lw0")
            if wt is not None and WT0: self(f"s_cmp_eq_u32 s{sL}, {wt}"); self(f"s_cbranch_scc1 {w0}")
            self(f"s_cmp_eq_u32 s{sFAST}, 0"); self(f"s_cbranch_scc1 {sl}")
            self(f"buffer_store_dwordx2 {vr(vt,2)}, v{vaddr}, {sr(sWS)}, 0 offen")
            self(f"s_branch {dn}")
            self.label(sl)
            self("buffer_wbl2 sc1"); self("s_waitcnt vmcnt(0)")
            self.label(w0)
            self(f"buffer_store_dwordx2 {vr(vt,2)}, v{vaddr}, {sr(sWS)}, 0 offen sc1")
            self.label(dn)
        self("s_mov_b64 exec, -1")
    def flagbits(self, vt):
        self(f"v_xor_b32 v{vt+2}, s{sN0}, v{vt}"); self(f"v_xor_b32 v{vt+3}, s{sN1}, v{vt+1}")
        self(f"v_lshrrev_b32 v{vt+3}, 4, v{vt+3}"); self(f"v_or_b32 v{vt+2}, v{vt+2}, v{vt+3}")
        self(f"v_cmp_ne_u32 vcc, 0, v{vt+2}")
    def flagtest(self, vt, ok):
        self(f"v_xor_b32 v{vt+2}, s{sN0}, v{vt}"); self(f"v_xor_b32 v{vt+3}, s{sN1}, v{vt+1}")
        self(f"v_lshrrev_b32 v{vt+3}, 4, v{vt+3}"); self(f"v_or_b32 v{vt+2}, v{vt+2}, v{vt+3}")
        self(f"v_cmp_ne_u32 vcc, 0, v{vt+2}"); self(f"s_cbranch_vccz {ok}")
    def poll(self, vaddr, vt, acquire):
        lp, ok = self.newlabel("Lpoll"), self.newlabel("Lok")
        self(f"s_mov_b32 s{sT[0]}, 0")
        self.label(lp)
        self(f"buffer_load_dwordx2 {vr(vt,2)}, v{vaddr}, {sr(sWS)}, 0 offen sc1")
        self("s_waitcnt vmcnt(0)")
        self.flagtest(vt, ok)
        self(f"s_add_u32 s{sT[0]}, s{sT[0]}, 1"); self(f"s_cmp_lt_u32 s{sT[0]}, {SPIN}"); self(f"s_cbranch_scc1 {lp}")
        self.label(ok)
    def poll2(self, vaddr, va, vb):
        if not POLL2: return self.poll(vaddr, va, False)
        lp, ok = self.newlabel("Lpoll"), self.newlabel("Lok")
        ld = lambda v: self(f"buffer_load_dwordx2 {vr(v,2)}, v{vaddr}, {sr(sWS)}, 0 offen sc1")
        self(f"s_mov_b32 s{sT[0]}, 0")
        ld(va); self(f"s_sleep {POLL2}"); ld(vb)
        self.label(lp)
        self("s_waitcnt vmcnt(1)"); self.flagtest(va, ok); ld(va)
        self("s_waitcnt vmcnt(1)"); self.flagtest(vb, ok); ld(vb)
        self(f"s_add_u32 s{sT[0]}, s{sT[0]}, 1"); self(f"s_cmp_lt_u32 s{sT[0]}, {SPIN}"); self(f"s_cbranch_scc1 {lp}")
        self.label(ok)
    def acquire(self):
        dn = self.newlabel("Lacq")
        self(f"s_cmp_eq_u32 s{sFAST}, 0"); self(f"s_cbranch_scc0 {dn}")
        self("buffer_inv sc1"); self("s_waitcnt vmcnt(0)")
        self.label(dn)

def sel_const(a, d, t):
    a(f"v_lshrrev_b32 v{t}, 2, v{vLANE}"); a(f"v_lshrrev_b32 v{t+1}, 4, v{vLANE}"); a(f"v_xor_b32 v{t}, v{t}, v{t+1}"); a(f"v_bfe_i32 v{t}, v{t}, 0, 1")
    a(f"v_not_b32 v{t}, v{t}"); a(f"v_and_b32 v{d}, 0x3f803f80, v{t}")
    for i in range(1, 4): a(f"v_mov_b32 v{d+i}, v{d}")
def mfma32(a, d, A, B, C): a(f"v_mfma_f32_32x32x16_bf16 {vr(d,16)}, {vr(A,4)}, {vr(B,4)}, {C if isinstance(C,str) else vr(C,16)}")
def mfma16(a, d, A, B, C): a(f"v_mfma_f32_16x16x32_bf16 {vr(d,4)}, {vr(A,4)}, {vr(B,4)}, {C if isinstance(C,str) else vr(C,4)}")

def tile_flag(a, v, base, shift, layer_add, tile, mine):
    s = sT[1]
    a(f"s_add_u32 s{s}, s{sL}, {layer_add}"); a(f"s_lshl_b32 s{s}, s{s}, 4"); a(f"s_add_u32 s{s}, s{s}, s{sRB}"); a(f"s_lshl_b32 s{s}, s{s}, 2"); a(f"s_add_u32 s{s}, s{s}, s{tile}")
    a(f"s_lshl_b32 s{s}, s{s}, {shift}"); a(f"s_add_u32 s{s}, s{s}, {base}")
    if isinstance(mine, str): a(f"s_lshl_b32 s{s+1}, {mine}, 3"); a(f"s_add_u32 s{s}, s{s}, s{s+1}"); a(f"v_mov_b32 v{v}, s{s}")
    else: a(f"v_and_b32 v{v}, {mine}, v{vLANE}"); a(f"v_lshl_add_u32 v{v}, v{v}, 3, s{s}")

def x_frags(a):
    s = sT[1]; assert XOUT
    a(f"s_lshl_b32 s{s}, s{sRB}, 2"); a(f"s_add_u32 s{s}, s{s}, s{sWID}")
    a(f"s_lshl_b32 s{s}, s{s}, 16"); a(f"s_lshl_b32 s{sXST}, s{sJ}, 12"); a(f"s_add_u32 s{sXST}, s{sXST}, s{s}")
    return [f"buffer_store_dwordx4 {vr(XRES+4*f,4)}, v{vL16}, {sr(sIO)}, s{sXST} offen offset:{f*1024}{STF}" for f in range(4)]
def x_stats(a, T):
    s = sT[1]
    a(f"s_mov_b32 s{s+3}, 0x3f803f80")
    for i in range(16):
        o = 2 * (i & 1)
        a(f"v_dot2_f32_bf16 v{T+o}, v{XRES+i}, s{s+3}, {'0' if i < 2 else 'v%d' % (T+o)}"); a(f"v_dot2_f32_bf16 v{T+o+1}, v{XRES+i}, v{XRES+i}, {'0' if i < 2 else 'v%d' % (T+o+1)}")
    a(f"v_lshlrev_b32 v{T+4}, 3, v{vLANE}")
    a(f"v_pk_add_f32 {vr(T,2)}, {vr(T,2)}, {vr(T+2,2)}")
    a(f"v_mov_b32 v{T+2}, v{T}"); a(f"v_mov_b32 v{T+3}, v{T+1}")
    a(f"v_permlane32_swap_b32 v{T}, v{T+2}"); a(f"v_permlane32_swap_b32 v{T+1}, v{T+3}")
    a(f"v_pk_add_f32 {vr(T,2)}, {vr(T,2)}, {vr(T+2,2)}")
def stats_store(a, fl, T):
    s = sT[1]
    a(f"s_lshl_b32 s{s}, s{sRB}, 2"); a(f"s_add_u32 s{s}, s{s}, s{sWID}")
    a(f"s_lshl_b32 s{s+2}, s{s}, 12"); a(f"s_lshl_b32 s{s+4}, s{sJ}, 8"); a(f"s_add_u32 s{s+2}, s{s+2}, s{s+4}"); assert ST == 0
    a("s_mov_b32 exec_hi, 0")
    a(f"buffer_store_dwordx2 {vr(T,2)}, v{T+4}, {sr(sWS)}, s{s+2} offen{fl}")
    a("s_mov_b64 exec, -1")

def io_addr(a, v):
    s = sT[1]
    a(f"s_lshl_b32 s{s}, s{sRB}, 2"); a(f"s_add_u32 s{s}, s{s}, s{sWID}"); a(f"s_lshl_b32 s{s}, s{s}, 16"); a(f"s_lshl_b32 s{s+1}, s{sJ}, 7"); a(f"s_add_u32 s{s}, s{s}, s{s+1}")
    a(f"v_and_b32 v{v}, 31, v{vLANE}"); a(f"v_lshlrev_b32 v{v}, 11, v{v}"); a(f"v_lshrrev_b32 v{v+1}, 5, v{vLANE}"); a(f"v_lshlrev_b32 v{v+1}, 4, v{v+1}")
    a(f"v_add3_u32 v{v}, v{v}, v{v+1}, s{s}")
def half_swaps(a):
    for f in range(4):
        a(f"v_permlane32_swap_b32 v{XRES+4*f}, v{XRES+4*f+2}"); a(f"v_permlane32_swap_b32 v{XRES+4*f+1}, v{XRES+4*f+3}")
def next_layer(a):
    a(f"s_add_u32 s{sL}, s{sL}, 1"); a(f"s_mov_b32 s{sROT}, s{sJ}"); a(f"s_mov_b32 s{sRM}, 15")
    a(f"s_lshr_b32 s{sLK}, s{sL}, 1"); a(f"s_lshl_b32 s{sLK}, s{sLK}, 17"); a(f"s_add_u32 s{sLK}, s{sLK}, {RGN - 3*8192}")
    a(f"s_bitcmp1_b32 s{sL}, 0"); a(f"s_cselect_b32 s{sLK}, s{sLK}, {RGN + KVA}"); a(f"s_cselect_b32 s{sKSH}, 13, 15")
    a(f"s_bitcmp1_b32 s{sL}, 0"); a(f"s_cselect_b32 s{sWO}, s{pWOB}, s{pWOA}"); a(f"s_cselect_b32 s{sWO+1}, s{pWOB+1}, s{pWOA+1}")
    a(f"s_cselect_b32 s{sW}, s{pWB}, s{pWA}"); a(f"s_cselect_b32 s{sW+1}, s{pWB+1}, s{pWA+1}")
    a(f"s_and_b32 s{sT[1]}, s{sL}, 1"); a(f"s_lshl_b32 s{sT[1]}, s{sT[1]}, 1"); a(f"s_lshl_b32 s{sOWN}, {OWN_A}, s{sT[1]}"); assert OWN_B == 4 * OWN_A

LX, LW, vHOT = 8, 12, 18
def loader_setup_w(a):
    s = sT[1]
    a(f"s_sub_u32 s{s}, s{sWID}, 4")
    a(f"s_lshl_b32 s{sMX}, s{s}, 12"); a(f"s_mul_i32 s{sMW}, s{s}, 6144")
    a(f"v_lshrrev_b32 v{LW}, 3, v{vLANE}"); a(f"v_mul_u32_u24 v{LW}, 6144, v{LW}"); a(f"v_add_u32 v{LW}, v{LW}, v{vCH}")
    a(f"s_mul_i32 s{s+1}, s{s}, {16*6144}"); a(f"s_lshl_b32 s{s+2}, s{sJ}, 7"); a(f"s_add_u32 s{s+1}, s{s+1}, s{s+2}"); a(f"v_add_u32 v{LW}, s{s+1}, v{LW}")
    for k in range(1, 6): a(f"v_add_u32 v{LW+k}, {(k//3)*8*6144 + (k%3)*1024}, v{LW}")
def loader_setup_x(a, first):
    s = sT[1]
    a(f"s_sub_u32 s{s}, s{sWID}, 4"); a(f"s_lshl_b32 s{s+1}, s{sRB}, 2"); a(f"s_add_u32 s{s}, s{s}, s{s+1}"); a(f"s_lshl_b32 s{s}, s{s}, 16")
    if first:
        a(f"s_mov_b32 s{sXSH}, 7")
        a(f"v_lshrrev_b32 v{LX+1}, 4, v{vLANE}"); a(f"v_and_b32 v{LX+2}, 7, v{vLANE}"); a(f"v_xor_b32 v{LX+1}, v{LX+1}, v{LX+2}"); a(f"v_lshlrev_b32 v{LX+1}, 4, v{LX+1}")
        a(f"v_lshrrev_b32 v{LX+2}, 3, v{vLANE}"); a(f"v_lshlrev_b32 v{LX+2}, 11, v{LX+2}"); a(f"v_add3_u32 v{LX}, v{LX+1}, v{LX+2}, s{s}")
        a(f"v_xor_b32 v{LX+1}, 64, v{LX}"); a(f"v_add_u32 v{LX+2}, {2*15360}, v{LX}"); a(f"v_add_u32 v{LX+3}, {3*15360}, v{LX+1}"); a(f"v_add_u32 v{LX+1}, 15360, v{LX+1}")
        a("s_waitcnt lgkmcnt(0)"); srd(a, sXS, pX, 4194304)
    else:
        if XOUT: srd(a, sXS, pOUT, 4194304)
        else: srd(a, sXS, pWS, WS_SIZE); a(f"s_add_u32 s{s}, s{s}, {XF}")
        a(f"s_mov_b32 s{sXSH}, 12")
        for k in range(4): a(f"v_add_u32 v{LX+k}, s{s}, v{vL16}")
def kstage(a, n):
    a(f"s_add_u32 s{sT[1]}, s{sROT}, {n}")
    a(f"s_and_b32 s{sT[1]}, s{sT[1]}, 15")
    a(f"s_lshl_b32 s{sXO}, s{sT[1]}, s{sXSH}"); a(f"s_mul_i32 s{sWOF}, s{sT[1]}, {WSTEP}")
def dma_w(a, n):
    for i in range(2):
        a(f"s_add_u32 m0, s{sMW}, {WB[n % 3] + i*3072}")
        for seg in range(3): a(f"buffer_load_dwordx4 v{LW+i*3+seg}, {sr(sW)}, s{sWOF} offen offset:{seg*1024} lds")
def dma_x(a, n):
    a(f"s_add_u32 m0, s{sMX}, {XB[n % 3]}")
    for k in range(4): a(f"buffer_load_dwordx4 v{LX+k}, {sr(sXS)}, s{sXO} offen offset:{k*1024}{LDF} lds")
def hot_line(a, v, q, base):
    s = sT[4]
    a(f"s_lshr_b32 s{s}, s{base}, 7"); a(f"s_sub_u32 s{s}, 3, s{s}"); a(f"s_and_b32 s{s}, s{s}, 7"); a(f"s_lshl_b32 s{s}, s{s}, 7")
    a(f"v_and_b32 v{v}, 1, v{q}"); a(f"v_lshlrev_b32 v{v}, 10, v{v}"); a(f"v_lshrrev_b32 v{q}, 1, v{q}"); a(f"v_lshlrev_b32 v{q}, 11, v{q}")
    a(f"v_add3_u32 v{v}, v{v}, v{q}, s{s}")
def hot_setup(a, t):
    s = sT[1]
    a(f"s_lshr_b32 s{s}, s2, 3"); a(f"s_mul_i32 s{s}, s{s}, 12"); a(f"s_sub_u32 s{s+1}, s{sWID}, 4"); a(f"s_mul_i32 s{s+1}, s{s+1}, 3"); a(f"s_add_u32 s{s}, s{s}, s{s+1}")
    a(f"v_mul_u32_u24 v{vHOT+1}, 21846, v{vLANE}"); a(f"v_lshrrev_b32 v{vHOT+1}, 16, v{vHOT+1}")
    a(f"v_mul_u32_u24 v{t}, 3, v{vHOT+1}"); a(f"v_sub_u32 v{t}, v{vLANE}, v{t}"); a(f"v_add_u32 v{t}, s{s}, v{t}")
    hot_line(a, vHOT, t, sW)
    a(f"v_bfe_u32 v{t}, v{vHOT}, 7, 4"); a(f"v_and_b32 v{t}, s{sRM}, v{t}"); a(f"v_add_u32 v{vHOT+1}, v{vHOT+1}, v{t}")
def hot_issue(a, first, count, t):
    s = sT[1]
    a(f"v_add_u32 v{t}, {first}, v{vHOT+1}"); a(f"v_and_b32 v{t}, 15, v{t}")
    a(f"s_mov_b32 s{s}, {WSTEP}"); a(f"v_mad_u32_u24 v{t}, v{t}, s{s}, v{vHOT}")
    a(f"s_mov_b64 exec, {(1 << (3 * count)) - 1}")
    a(f"buffer_load_dword v{vDUM}, v{t}, {sr(sW)}, 0 offen")
    a("s_mov_b64 exec, -1")
def hot_burst(a, t):
    if HOT: hot_setup(a, t); hot_issue(a, 0, HOTD + 1, t)
def hot_slab(t, sd, nw, v):
    s = sT[1]; per = 24 // nw; sh = {8: 3, 4: 2}[nw]
    t(f"s_lshr_b32 s{s}, s2, 3"); t(f"s_lshl_b32 s{s}, s{s}, {sh}"); t(f"s_and_b32 s{s+1}, s{sWID}, {nw-1}"); t(f"s_add_u32 s{s}, s{s}, s{s+1}")
    t(f"s_lshr_b32 s{s+1}, s{s}, {sh+3}"); t(f"s_and_b32 s{s}, s{s}, {8*nw-1}"); t(f"s_mul_i32 s{s}, s{s}, {per*2048}")
    t(f"s_lshr_b32 s{s+2}, s{sd}, 7"); t(f"s_sub_u32 s{s+2}, 3, s{s+2}"); t(f"s_and_b32 s{s+2}, s{s+2}, 7"); t(f"s_and_b32 s{s+3}, s{s+1}, 1"); t(f"s_lshl_b32 s{s+3}, s{s+3}, 3"); t(f"s_add_u32 s{s+2}, s{s+2}, s{s+3}")
    t(f"s_lshr_b32 s{s+1}, s{s+1}, 1"); t(f"s_and_b32 s{s+3}, s{sRB}, 14"); t(f"s_add_u32 s{s+1}, s{s+1}, s{s+3}")
    if SLABJ: t(f"s_add_u32 s{s+1}, s{s+1}, s{s+2}"); t(f"s_and_b32 s{s+1}, s{s+1}, 15")
    t(f"s_mul_i32 s{s+1}, s{s+1}, {WSTEP}"); t(f"s_add_u32 s{s}, s{s}, s{s+1}"); t(f"s_lshl_b32 s{s+2}, s{s+2}, 7"); t(f"s_add_u32 s{s}, s{s}, s{s+2}")
    t(f"v_lshlrev_b32 v{v}, 11, v{vLANE}")
    t(f"s_mov_b64 exec, {(1 << per) - 1}"); t(f"buffer_load_dword v{vDUM}, v{v}, {sr(sd)}, s{s} offen"); t("s_mov_b64 exec, -1")
def w_touch(a, t):
    if not WTOUCH: return
    s = sT[1]
    a(f"s_lshr_b32 s{s}, s2, 3"); a(f"s_lshl_b32 s{s}, s{s}, 2"); a(f"s_add_u32 s{s}, s{s}, s{sWID}"); a(f"s_sub_u32 s{s}, s{s}, 4"); a(f"s_mul_i32 s{s}, s{s}, {2*WTL*128}")
    a(f"s_and_b32 s{s+1}, s{sRB}, 14"); a(f"s_mul_i32 s{s+1}, s{s+1}, {WSTEP}"); a(f"s_add_u32 s{s}, s{s}, s{s+1}")
    a(f"v_lshlrev_b32 v{t}, 7, v{vLANE}"); a(f"v_add_u32 v{t}, s{s}, v{t}"); a(f"v_add_u32 v{t+1}, {WTL*128}, v{t}")
    for k in range(2): a(f"v_subrev_u32 v{t+2}, 6291456, v{t+k}"); a(f"v_min_u32 v{t+k}, v{t+k}, v{t+2}")
    a(f"s_mov_b32 exec_hi, {(1 << (WTL - 32)) - 1}")
    for k in range(2): a(f"buffer_load_dword v{vDUM}, v{t+k}, {sr(sW)}, 0 offen")
    a("s_mov_b64 exec, -1")

class VM:
    def __init__(self, a): self.a = a; self.q = []
    def add(self, tag, n=1): self.q += [tag] * n
    def wait(self, tag, extra=""):
        if tag not in self.q:
            if extra: self.a("s_waitcnt" + extra)
            return
        last = max(i for i, t in enumerate(self.q) if t == tag)
        n = len(self.q) - 1 - last
        assert n <= 63
        self.a(f"s_waitcnt vmcnt({n}){extra}")
        self.q = self.q[last + 1:]

S_, CF, CD, G_, TA = 24, 64, 96, 104, 56
def loader_pre(a):
    s = sT[1]
    a(f"s_lshl_b32 s{s}, s{sL}, 4"); a(f"s_add_u32 s{s}, s{s}, s{sJ}"); a(f"s_lshl_b32 s{s}, s{s}, 9"); a(f"s_add_u32 s{s}, s{s}, {CSFL}"); a(f"v_lshl_add_u32 v{TA+2}, v{vLANE}, 3, s{s}")
    a(f"v_lshlrev_b32 v{TA+4}, 2, v{vLANE}")
    a(f"s_sub_u32 s{s+4}, s{sWID}, 4"); tile_flag(a, TA + 5, SFL, 7, 0, s + 4, 15)
    a(f"v_subrev_u32 v{TA+6}, {SFL - XFL}, v{TA+5}")
    if SWARM:
        a(f"s_lshl_b32 s{s}, s{sRB}, 4"); a(f"s_add_u32 s{s}, s{s}, s{s+4}"); a(f"s_lshl_b32 s{s}, s{s}, 16"); a(f"s_lshl_b32 s{s+1}, s{sJ}, 12"); a(f"s_add_u32 s{s}, s{s}, s{s+1}")
        a(f"s_add_u32 s{s}, s{s}, {RGN + OF}"); a(f"s_add_u32 s44, s{pWS}, s{s}"); a(f"s_addc_u32 s45, s{pWS+1}, 0")
        a(f"s_lshl_b32 s{s}, s2, 2"); a(f"s_add_u32 s{s}, s{s}, s{s+4}"); a(f"s_lshl_b32 s{s}, s{s}, 11"); a(f"s_add_u32 s46, s{sWO}, s{s}"); a(f"s_addc_u32 s47, s{sWO+1}, 0")
    a(f"v_and_b32 v{TA}, 15, v{vLANE}"); a(f"v_lshlrev_b32 v{TA+1}, 4, v{TA}"); a(f"v_lshrrev_b32 v{TA+7}, 4, v{vLANE}"); a(f"v_lshl_add_u32 v{TA+1}, v{TA+7}, 10, v{TA+1}")
    a(f"s_lshl_b32 s{s}, s{s+4}, 7"); a(f"s_add_u32 s{s}, s{s}, {TAB}"); a(f"v_lshrrev_b32 v{TA+7}, 5, v{vLANE}"); a(f"v_lshl_add_u32 v{TA+7}, v{TA}, 1, v{TA+7}"); a(f"v_lshl_add_u32 v{TA+7}, v{TA+7}, 2, s{s}")
    a(f"s_mul_i32 s{s}, s{s+4}, 192"); a(f"s_add_u32 s{s}, s{s}, {TAB+1024}"); a(f"v_add_u32 v{TA+3}, s{s}, v{TA+4}")

def loader(a, cs):
    S, G = S_, G_
    s = sT[1]
    vm = VM(a)
    vm.add(("st", 1))
    items = [(46, i * 128, False) for i in range(16)] + [(44, i * 128, True) for i in range(32)]
    sw = [items[i:i + SWARM] for i in range(0, len(items), SWARM)] if SWARM else []
    assert len(sw) <= 13
    for n in range(17):
        if n:
            if n < 16: vm.wait(("st", n))
            else: a("s_waitcnt lgkmcnt(0)")
            a("s_barrier")
        if n == 16:
            if cs:
                a(f"v_mov_b32 v{vCS1}, v{vCS0}"); a(f"ds_read_b32 v{vCS0}, v{TA+3}")
            break
        if n <= 13:
            kstage(a, n + 2); dma_x(a, n + 2); vm.add(("st", n + 2), 4)
            if n: dma_w(a, n + 2); vm.add(("st", n + 2), 6)
        if cs and SWARM and n < len(sw):
            l = a.newlabel("Lsw")
            for pair, off, only0 in sw[n]:
                if only0 and l: a(f"s_cmp_lg_u32 s{sL}, 0"); a(f"s_cbranch_scc1 {l}"); lab, l = l, None
                a(f"s_load_dwordx2 s[98:99], s[{pair}:{pair+1}], {off + 60}")
            if l is None: a.label(lab)
        if HOT and n == WOHOT:
            a(f"s_lshr_b32 s{s}, s2, 3"); a(f"s_lshl_b32 s{s}, s{s}, 6"); a(f"s_sub_u32 s{s+1}, s{sWID}, 4"); a(f"s_lshl_b32 s{s+1}, s{s+1}, 4"); a(f"s_add_u32 s{s}, s{s}, s{s+1}")
            a(f"v_add_u32 v{S+20}, s{s}, v{vLANE}"); hot_line(a, S + 21, S + 20, sWO)
            a("s_mov_b64 exec, 0xffff"); a(f"buffer_load_dword v{vDUM}, v{S+21}, {sr(sWO)}, 0 offen"); a("s_mov_b64 exec, -1"); vm.add("hot")
        if HOT and n % 4 == 0 and n + HOTD + 1 <= 16:
            hot_issue(a, n + HOTD + 1, 4, S + 21); vm.add("hot")
        if n == 5:
            a(f"buffer_load_dwordx2 {vr(S,2)}, v{TA+5}, {sr(sWS)}, 0 offen sc1"); vm.add("XF")
        if n == 8:
            assert "XF" not in vm.q
            ok = a.newlabel("Lxok")
            if DIAG: a(f"s_mov_b32 s{sT[0]}, -1")
            a.flagtest(S, ok); a.poll(TA + 5, S, False); a.label(ok)
            if DIAG: a(f"s_add_u32 s{sT[0]}, s{sT[0]}, 1"); a(f"s_add_u32 m0, s{sL}, 4"); a(f"v_writelane_b32 v7, s{sT[0]}, m0")
            if cs:
                a(f"v_cmp_ne_u32 vcc, s{sN1}, v{S+1}"); a("s_cmp_eq_u64 vcc, 0"); a(f"s_cselect_b32 s{sFAST}, 1, 0")
                a(f"v_mov_b32 v{S+18}, s{sFAST}"); a(f"v_mov_b32 v{S+19}, {TAB+1792}"); a(f"ds_write_b32 v{S+19}, v{S+18}")
            a(f"s_sub_u32 s{s}, s{sWID}, 4"); a(f"s_lshl_b32 s{s+1}, s{sRB}, 2"); a(f"s_add_u32 s{s+1}, s{s}, s{s+1}"); a(f"s_lshl_b32 s{s+1}, s{s+1}, 12")
            for i in range(4): a(f"buffer_load_dwordx4 {vr(S+4*i,4)}, v{TA+1}, {sr(sWS)}, s{s+1} offen offset:{i*256} sc1")
            vm.add("stats", 4)
        if n == 12 and cs:
            a(f"buffer_load_dwordx2 {vr(S+16,2)}, v{TA+2}, {sr(sWS)}, 0 offen sc1"); vm.add("F")
        if n == 14:
            assert "stats" not in vm.q
            for i in range(4): a(f"v_pk_add_f32 {vr(S+2*i,2)}, {vr(S+2*i,2)}, {vr(S+8+2*i,2)}")
            for i in range(2): a(f"v_pk_add_f32 {vr(S+2*i,2)}, {vr(S+2*i,2)}, {vr(S+4+2*i,2)}")
            a(f"v_permlane32_swap_b32 v{S}, v{S+2}"); a(f"v_permlane32_swap_b32 v{S+1}, v{S+3}")
            a(f"v_pk_add_f32 {vr(S,2)}, {vr(S,2)}, {vr(S+2,2)}")
            a(f"v_mov_b32 v{S+2}, v{S}"); a(f"v_mov_b32 v{S+3}, v{S+1}")
            a(f"v_permlane16_swap_b32 v{S}, v{S+2}"); a(f"v_permlane16_swap_b32 v{S+1}, v{S+3}")
            a(f"v_pk_add_f32 {vr(S,2)}, {vr(S,2)}, {vr(S+2,2)}")
            a(f"v_mul_f32 v{S}, 0xba800000, v{S}"); a(f"v_mul_f32 v{S+1}, 0x3a800000, v{S+1}")
            a(f"v_fma_f32 v{S+1}, -v{S}, v{S}, v{S+1}"); a(f"v_max_f32 v{S+1}, 0, v{S+1}"); a(f"v_add_f32 v{S+1}, 0x3727c5ac, v{S+1}")
            a(f"v_rsq_f32 v{S+1}, v{S+1}"); a(f"v_mul_f32 v{S}, v{S}, v{S+1}")
            a(f"ds_write_b32 v{TA+7}, v{S+1}"); a(f"ds_write_b32 v{TA+7}, v{S} offset:512")
        if n == 13 and cs:
            vm.wait("F")
            ok = a.newlabel("Lcsok")
            if DIAG: a(f"s_mov_b32 s{sT[0]}, -1")
            a.flagtest(S + 16, ok); a.poll(TA + 2, S + 16, False); a.label(ok)
            if DIAG: a(f"s_add_u32 s{sT[0]}, s{sT[0]}, 1"); a(f"s_mov_b32 m0, s{sL}"); a(f"v_writelane_b32 v7, s{sT[0]}, m0")
            a(f"s_sub_u32 s{s}, s{sWID}, 4"); a(f"s_mul_i32 s{s}, s{s}, 192"); a(f"s_lshl_b32 s{s+1}, s{sL}, 4"); a(f"s_add_u32 s{s+1}, s{s+1}, s{sJ}"); a(f"s_mul_i32 s{s+1}, s{s+1}, {16*768}")
            a(f"s_add_u32 s{s}, s{s}, s{s+1}"); a(f"s_add_u32 s{s}, s{s}, {CSP}")
            a(f"v_lshrrev_b32 v{S+22}, 2, v{vLANE}"); a(f"v_mul_u32_u24 v{S+22}, 768, v{S+22}"); a(f"v_and_b32 v{S+23}, 3, v{vLANE}"); a(f"v_lshl_add_u32 v{S+22}, v{S+23}, 4, v{S+22}")
            for i in range(3): a(f"buffer_load_dwordx4 {vr(G+4*i,4)}, v{S+22}, {sr(sWS)}, s{s} offen offset:{i*64} sc1")
            vm.add("G", 3)
        if n == 15 and cs:
            vm.wait("G")
            for rot in (4, 8):
                for i in range(12): a(f"v_add_f32_dpp v{G+i}, v{G+i}, v{G+i} row_ror:{rot} row_mask:0xf bank_mask:0xf")
            for sw in ("16", "32"):
                for i in range(12): a(f"v_mov_b32 v{S+i}, v{G+i}")
                for i in range(12): a(f"v_permlane{sw}_swap_b32 v{G+i}, v{S+i}")
                for i in range(6): a(f"v_pk_add_f32 {vr(G+2*i,2)}, {vr(G+2*i,2)}, {vr(S+2*i,2)}")
            a(f"s_sub_u32 s{s}, s{sWID}, 4"); a(f"s_mul_i32 s{s}, s{s}, 192"); a(f"s_add_u32 s{s}, s{s}, {TAB+1024}"); a(f"v_and_b32 v{S}, 3, v{vLANE}"); a(f"v_lshl_add_u32 v{S}, v{S}, 4, s{s}")
            for i in range(3): a(f"ds_write_b128 v{S}, {vr(G+4*i,4)} offset:{i*64}")
        if n == 14 and not cs:
            for x in ["s_mov_b32 exec_hi, 0xffff", f"ds_write_b32 v{TA+3}, v{vCS1}", "s_mov_b64 exec, -1", f"v_mov_b32 v{vCS1}, v{vCS0}"]: a(x)

def wo_setup(a):
    s = sT[1]
    a(f"s_and_b32 s{s}, s{sWID}, 3"); a(f"s_lshl_b32 s{sWP}, s{s}, 10"); a(f"s_lshr_b32 s{sWH}, s{sWID}, 2")
    a(f"s_lshl_b32 s{sWQ}, s{sWH}, 12"); a(f"s_add_u32 s{sWQ}, s{sWQ}, s{sWP}")
    a(f"s_lshl_b32 s{sWR}, s{sJ}, {17 if G2OWN else 31}"); a(f"s_lshl_b32 s{sWR+1}, s{sWH}, 16"); a(f"s_add_u32 s{sWR+1}, s{sWR+1}, s{sWR}")
    a(f"s_lshl_b32 s{s}, s{s}, 14"); a(f"s_lshl_b32 s{s+1}, s{sJ}, 7"); a(f"s_add_u32 s{s}, s{s}, s{s+1}")
    a(f"v_lshrrev_b32 v{vWO}, 3, v{vLANE}"); a(f"v_lshlrev_b32 v{vWO}, 11, v{vWO}"); a(f"v_add3_u32 v{vWO}, v{vWO}, v{vCH}, s{s}")
def wo_one(step, split=False):
    s = sT[10]
    return [f"s_add_u32 m0, s{sWQ if split else sWP}, {step*4096}", f"s_add_u32 s{s}, s{sWR+1 if split else sWR}, {step*65536}", f"s_and_b32 s{s}, s{s}, 0x1fffff",
            f"buffer_load_dwordx4 v{vWO}, {sr(sWO)}, s{s} offen lds"]
def wo_dma(a, steps):
    for st in steps:
        for x in wo_one(st): a(x)

ACC, FR = 24, 120
AX, AW, BX, BW = 236, 240, 242, 246
def acc(seg, tt): return ACC + (seg * 2 + tt) * 16
xfr = lambda p, tt: FR + p * 20 + tt * 4
wfr = lambda p, seg: FR + p * 20 + 8 + seg * 4
def c_reads(p, ks, segs):
    L = []
    def rx(tt): L.append(f"ds_read_b128 {vr(xfr(p,tt),4)}, v{AX+ks} offset:{tt*4096}")
    def rw(seg):
        for hf in range(2): L.append(f"ds_read_b64_tr_b16 {vr(wfr(p,seg)+2*hf,2)}, v{AW+hf} offset:{ks*6144 + seg*1024}")
    rx(0); rw(segs[0]); rx(1)
    for g in segs[1:]: rw(g)
    return L
def c_step(a, p, segs, nxt, bar=False, extra=(), place=None, init=False):
    order = [(g, tt) for g in segs for tt in range(2)]
    have = 2 + 2 * len(segs)
    need = [3, 4] + [4 + 2 * (1 + (m - 2) // 2) for m in range(2, len(order))]
    if place is None: place = [2] * len(order)
    issued = 0; extra = list(extra)
    bm = min(BARM, len(order) - 1) if bar and bar != "top" else 0
    if bar and bm:
        nr = -(-len(nxt) // (len(order) - bm)); place = [0] * bm + [nr] * (len(order) - bm)
        extra = [[] for _ in range(bm)] + [extra[0]] + [sum(extra[1:], [])] if extra else []
    for m, (seg, tt) in enumerate(order):
        if bar and m >= bm:
            if m == bm: a("s_waitcnt lgkmcnt(0)"); a("s_barrier")
        elif m == 0 or need[m] != need[m-1]: a(f"s_waitcnt lgkmcnt({min(15, have - need[m] + issued)})")
        X, W = vr(xfr(p,tt),4), vr(wfr(p,seg),4)
        A, B = (W, X) if seg < 2 else (X, W)
        a(f"v_mfma_f32_32x32x16_bf16 {vr(acc(seg,tt),16)}, {A}, {B}, {'0' if init else vr(acc(seg,tt),16)}")
        for x in (extra[m] if m < len(extra) else ()): a(x)
        k = place[m] if m + 1 < len(order) else len(nxt)
        for r in nxt[issued:issued + k]: a(r)
        issued = min(len(nxt), issued + k)
def rebase(n):
    xs, ws = (f"s{sSLOT}", f"s{sWOF}") if n is None else (XB[n % 3], WB[n % 3])
    ax = lambda k: f"v_add_u32 v{AX+k}, {xs}, v{BX+k}"
    aw = lambda k: f"v_add_u32 v{AW+k}, {ws}, v{BW+k}"
    return [[ax(0), aw(0), aw(1)], [], [], [ax(1)]], [[], [ax(2)], [], [ax(3)]]
def warm(a, what, lo, cnt, v):
    s = sT[1]
    if what in ("o", "x"):
        a(f"s_lshl_b32 s{s+1}, s{sRB}, {4 if what == 'o' else 2}"); a(f"s_add_u32 s{s}, s{sWID}, s{s+1}"); a(f"s_lshl_b32 s{s}, s{s}, 16")
        a(f"s_lshl_b32 s{s+1}, s{sJ}, 12"); a(f"s_add_u32 s{s}, s{s}, s{s+1}"); a(f"s_add_u32 s{s}, s{s}, {lo*128 + (RGN + OF if what == 'o' else 0)}")
        assert XOUT
    else:
        p, size, per = {"wo": (sWO, 2097152, 16), "woa": (pWOA, 2097152, 16), "wb": (pWB, 6291456, 48), "wob": (pWOB, 2097152, 16)}[what]
        srd(a, 40, p, size)
        a(f"s_lshl_b32 s{s}, s2, 2"); a(f"s_add_u32 s{s}, s{s}, s{sWID}"); a(f"s_mul_i32 s{s}, s{s}, {per*128}"); a(f"s_add_u32 s{s}, s{s}, {lo*128}")
    if what in ("o", "x") and PREW:
        for k in range(cnt // 8): a(f"buffer_store_dwordx4 {vr(XRES,4)}, v{vL16}, {sr({'o': sWS, 'x': sIO}[what])}, s{s} offen offset:{k*1024} sc1")
        return
    a(f"v_lshlrev_b32 v{v}, 7, v{vLANE}")
    a(f"s_mov_b32 exec_lo, {min(0xffffffff, (1 << cnt) - 1)}"); a(f"s_mov_b32 exec_hi, {(1 << max(0, cnt - 32)) - 1}")
    a(f"buffer_load_dword v{vDUM}, v{v}, {sr({'o': sWS, 'x': sIO}.get(what, 40))}, s{s} offen"); a("s_mov_b64 exec, -1")
SLAB = 96 * 1024
HS, HA, HW, HF, HD, HR = 170, 174, 176, 182, 184, 192
sH, sHO, sHS = 79, 38, 34
def slab_setup(a, base, w0):
    s = sT[1]; sw = sT[7]
    a(f"s_sub_u32 s{sw}, s{sWID}, {w0}")
    if SLABJ: a(f"s_add_u32 s{s}, s{sROT}, s{sRB}"); a(f"s_and_b32 s{s}, s{s}, 15"); a(f"s_mul_i32 s{sHO}, s{s}, {WSTEP}")
    else: a(f"s_mul_i32 s{sHO}, s{sRB}, {WSTEP}"); assert RM0 == 0
    a(f"v_lshrrev_b32 v{HW}, 3, v{vLANE}"); a(f"v_mul_u32_u24 v{HW}, 6144, v{HW}"); a(f"v_add_u32 v{HW}, v{HW}, v{vCH}")
    a(f"s_mul_i32 s{s+1}, s{sw}, {16*6144}"); a(f"s_lshl_b32 s{s+2}, s{sJ}, 7"); a(f"s_add_u32 s{s+1}, s{s+1}, s{s+2}"); a(f"v_add_u32 v{HW}, s{s+1}, v{HW}")
    for k in range(1, 6): a(f"v_add_u32 v{HW+k}, {(k//3)*8*6144 + (k%3)*1024}, v{HW}")
    sel_const(a, HS, HR)
    a(f"s_mov_b32 s{s}, s{sw}"); a(f"s_add_u32 s{s+1}, s{s}, 4"); a(f"s_cmp_lt_u32 s{s}, 2"); a(f"s_cselect_b32 s{s+1}, s{s+1}, s{s}")
    for c in range(2):
        a(f"s_and_b32 s{s+2}, s{s+c}, 1"); a(f"s_lshl_b32 s{s+2}, s{s+2}, 6"); a(f"v_xor_b32 v{HA+c}, s{s+2}, v{vTR}")
        a(f"s_lshr_b32 s{s+2}, s{s+c}, 1"); a(f"s_lshl_b32 s{s+2}, s{s+2}, 10"); a(f"s_add_u32 s{s+2}, s{s+2}, {base}"); a(f"v_add_u32 v{HA+c}, s{s+2}, v{HA+c}")
    a(f"s_lshl_b32 s{s+2}, s{sL}, 8"); a(f"s_lshl_b32 s{s+3}, s{sJ}, 4"); a(f"s_add_u32 s{s+2}, s{s+2}, s{s+3}"); a(f"s_add_u32 s{s+2}, s{s+2}, s{sRB}")
    a(f"s_lshl_b32 s{s+3}, s{s+2}, 2"); a(f"s_add_u32 s{s+3}, s{s+3}, s{sw}"); a(f"s_lshl_b32 s{s+3}, s{s+3}, 3"); a(f"s_add_u32 s{s+3}, s{s+3}, {CSFL}"); a(f"v_mov_b32 v{HF}, s{s+3}")
    a(f"s_mul_i32 s{s+2}, s{s+2}, 768"); a(f"s_add_u32 s{s+2}, s{s+2}, {CSP}")
    for c in range(2): a(f"s_lshl_b32 s{sHS+c}, s{s+c}, 7"); a(f"s_add_u32 s{sHS+c}, s{sHS+c}, s{s+2}")
    a(f"v_lshlrev_b32 v{HF+1}, 2, v{vLANE}")
def slab_dma(a, base, w0):
    s = sT[1]
    a(f"s_sub_u32 s{s}, s{sWID}, {w0}"); a(f"s_mul_i32 s{s}, s{s}, 6144")
    for i in range(2):
        a(f"s_add_u32 m0, s{s}, {base + i*3072}")
        for seg in range(3): a(f"buffer_load_dwordx4 v{HW+i*3+seg}, {sr(sW)}, s{sHO} offen offset:{seg*1024} lds")
def slab_sums(a):
    for ks in range(4):
        for c in range(2):
            for hf in range(2): a(f"ds_read_b64_tr_b16 {vr(HR+16*c+4*ks+2*hf,2)}, v{HA+c} offset:{(2*ks+hf)*3072}")
    for ks in range(4):
        a(f"s_waitcnt lgkmcnt({12 - 4*ks})")
        for c in range(2): mfma16(a, HD + 4 * c, HS, HR + 16 * c + 4 * ks, "0" if ks == 0 else HD + 4 * c)
    a("s_mov_b32 exec_hi, 0")
    for c in range(2): a(f"buffer_store_dword v{HD+4*c}, v{HF+1}, {sr(sWS)}, s{sHS+c} offen sc1")
    a("s_mov_b64 exec, -1")
def slab_hooks(a):
    s = sT[1]
    L = [a.newlabel("Lsl") for _ in range(4)]
    a(f"s_sub_u32 s{s}, s{sCNT}, s{sH}")
    a(f"s_cmp_lg_u32 s{s}, 0"); a(f"s_cbranch_scc1 {L[0]}")
    slab_dma(a, SLAB, 0); a("s_branch L_cloop")
    a.label(L[0]); a(f"s_cmp_lg_u32 s{s}, 2"); a(f"s_cbranch_scc1 {L[1]}")
    a("s_waitcnt vmcnt(0)"); a("s_branch L_cloop")
    a.label(L[1]); a(f"s_cmp_lg_u32 s{s}, 3"); a(f"s_cbranch_scc1 {L[2]}")
    slab_sums(a); a("s_branch L_cloop")
    a.label(L[2])
    a("s_waitcnt vmcnt(0)"); a.post(HF, HD, True)
    for w in ([] if SWARM else WARM): warm(a, *w, HD + 2)
    a(f"s_cmp_lg_u32 s{sWID}, 1"); a("s_cbranch_scc1 L_cloop")
    srd(a, 40, pDBG, 256)
    a("v_mov_b32 v160, 0"); a("v_mov_b32 v161, 1"); a("s_mov_b64 exec, 1"); a(f"buffer_atomic_add v161, v160, {sr(40)}, 0 offen"); a("s_mov_b64 exec, -1")
    a("s_branch L_cloop")
def c_setup(a, first, zero=True):
    s = sT[1]
    a(f"s_lshr_b32 s{s}, s{sWID}, 1"); a(f"s_lshl_b32 s{s}, s{s}, 13"); a(f"s_and_b32 s{s+1}, s{sWID}, 1"); a(f"s_lshl_b32 s{s+1}, s{s+1}, 6")
    a(f"v_xor_b32 v{BW}, s{s+1}, v{vTR}")
    if first:
        a(f"v_and_b32 v{BX}, 31, v{vLANE}"); a(f"v_bfe_u32 v{BX+1}, v{vLANE}, 1, 3"); a(f"v_lshrrev_b32 v{BX+2}, 5, v{vLANE}"); a(f"v_xor_b32 v{BX+1}, v{BX+1}, v{BX+2}")
        a(f"v_lshlrev_b32 v{BX}, 7, v{BX}"); a(f"v_lshlrev_b32 v{BX+1}, 4, v{BX+1}"); a(f"v_add3_u32 v{BX}, v{BX}, v{BX+1}, s{s}")
        a(f"v_mul_u32_u24 v{BX+2}, {3072 - 512}, v{BX+2}"); a(f"v_add_u32 v{BW}, v{BW}, v{BX+2}"); a(f"v_add_u32 v{BW+1}, 512, v{BW}")
        for k in range(1, 4): a(f"v_xor_b32 v{BX+k}, {32*k}, v{BX}")
    else:
        a(f"v_add_u32 v{BX}, s{s}, v{vL16}"); a(f"v_add_u32 v{BW+1}, 3072, v{BW}")
        for k in range(1, 4): a(f"v_add_u32 v{BX+k}, {1024*k}, v{BX}")
    T0, T1, T2, MD = 250, 251, 252, 253
    for x in [f"s_lshr_b32 s{s}, s{sWID}, 1", f"s_lshl_b32 s{s}, s{s}, 8", f"s_add_u32 s{s}, s{s}, {TAB}",
          f"v_and_b32 v{T0}, 31, v{vLANE}", f"v_lshrrev_b32 v{T1}, 5, v{vLANE}", f"v_lshlrev_b32 v{T1}, 4, v{T1}",
          f"s_and_b32 s{s+1}, s{sWID}, 1", f"s_lshl_b32 s{s+1}, s{s+1}, 7", f"s_add_u32 s{s+1}, s{s+1}, {TAB+1024}",
          f"v_lshl_add_u32 v{T2}, v{T0}, 2, s{s+1}", f"v_lshl_add_u32 v{T0}, v{T0}, 2, s{s}",
          f"v_add_u32 v{MI}, s{s+1}, v{T1}", f"v_add_u32 v{MI+1}, s{s}, v{T1}", f"v_mov_b32 v{MD}, {TAB+1792}"]: a(x)
    a(f"s_mov_b32 s{sMX}, 0")
    a(f"s_mov_b32 s{sCNT}, 0"); a(f"s_mov_b32 s{sSLOT}, {XB[0]}"); a(f"s_mov_b32 s{sWOF}, {WB[0]}")
    for k in range(4): a(f"v_add_u32 v{AX+k}, {XB[0]}, v{BX+k}")
    for k in range(2): a(f"v_add_u32 v{AW+k}, {WB[0]}, v{BW+k}")
    if zero:
        for r in range(ACC, ACC + 96): a(f"v_mov_b32 v{r}, 0")
def c_own_entry(a):
    x_stats(a, 160)
    a("s_waitcnt vmcnt(0)"); a.post(166, 168, False); a(f"v_add_u32 v166, {SFL - XFL}, v166")
    stats_store(a, "", 160)
    for r in range(ACC, ACC + 96): a(f"v_mov_b32 v{r}, 0")
    a("s_waitcnt vmcnt(0) lgkmcnt(0)"); a.post(166, 168, False)
    a("s_branch L_cgo")
def consumer(a):
    s = sT[1]
    ALL, KVs, Qs = (0, 1, 2), (1, 2), (0,)
    P6 = [2, 2, 2, 2, 0, 0]
    a("s_barrier")
    a.stamp("c_g1start")
    if a.stamps and TRACE: a("s_memrealtime s[92:93]" if RT else "s_memtime s[92:93]")
    for r in c_reads(0, 0, ALL): a(r)
    r1, r2 = rebase(None)
    a.label("L_cloop")
    nslot = [f"s_add_u32 s{sSLOT}, s{sSLOT}, 16384", f"s_cmp_gt_u32 s{sSLOT}, {XB[2]}", f"s_cselect_b32 s{sSLOT}, {XB[0]}, s{sSLOT}"]
    nw = [[f"s_add_u32 s{sWOF}, s{sWOF}, 24576", f"s_cmp_eq_u32 s{sWOF}, {WB[2] + 24576}", f"s_cselect_b32 s{sWOF}, {WB[0]}, s{sWOF}"],
          [f"s_cmp_eq_u32 s{sWOF}, {WB[0] + 24576}", f"s_cselect_b32 s{sWOF}, {WB[1]}, s{sWOF}"]]
    c_step(a, 0, ALL, c_reads(1, 1, ALL), place=P6, extra=r2 + [nslot])
    c_step(a, 1, ALL, c_reads(0, 2, ALL), place=P6, extra=[[], [], [], []] + nw); c_step(a, 0, ALL, c_reads(1, 3, ALL), place=P6)
    a(f"s_cmp_eq_u32 s{sCNT}, 12"); a("s_cbranch_scc1 L_ctail")
    c_step(a, 1, ALL, c_reads(0, 0, ALL), bar=True, place=P6, extra=r1)
    def trace(idx):
        if not (a.stamps and TRACE): return
        a(f"s_sub_u32 s68, s92, s{80 if RT else sT0}"); a("s_memrealtime s[92:93]" if RT else "s_memtime s[92:93]")
        a(f"s_lshl_b32 s69, s{sL}, 4"); a(f"s_add_u32 m0, s69, {idx}"); a("v_writelane_b32 v7, s68, m0")
    trace(f"s{sCNT}")
    a(f"s_add_u32 s{sCNT}, s{sCNT}, 1")
    a(f"s_bitcmp1_b32 s{sMX}, s{sCNT}"); a("s_cbranch_scc0 L_cloop")
    slab_hooks(a)
    a.label("L_ctail")
    CQ, CK, VA, QAB = 170, 186, 202, 160
    AB, CV, T0, T1, T2, MD, TM = 164, 168, 250, 251, 252, 253, 120
    r1, r2 = rebase(13)
    c_step(a, 1, ALL, c_reads(0, 0, KVs), bar=True, place=P6, extra=r1)
    trace(12)
    vtab = lambda tt: [f"ds_read_b128 {vr(VA+ab*16+4*g,4)}, v{MI+1} offset:{ab*512 + tt*128 + g*32}" for g in range(4) for ab in range(2)]
    tr = []
    for tt in range(2):
        tr.append(f"ds_read_b32 v{AB+2*tt}, v{T0} offset:{tt*128}"); tr.append(f"ds_read_b32 v{AB+2*tt+1}, v{T0} offset:{512+tt*128}")
    for g in range(4): tr.append(f"ds_read_b128 {vr(CK+4*g,4)}, v{MI} offset:{256+g*32}")
    tr.append(f"ds_read_b32 v{CV}, v{T2} offset:512"); tr.append(f"ds_read_b32 v{MD}, v{MD}")
    tr += vtab(1)
    for g in range(4): tr.append(f"ds_read_b128 {vr(CQ+4*g,4)}, v{MI} offset:{g*32}")
    for n in (13, 14, 15):
        c_step(a, 0, KVs, c_reads(1, 1, KVs), extra=r2); c_step(a, 1, KVs, c_reads(0, 2, KVs)); c_step(a, 0, KVs, c_reads(1, 3, KVs))
        r1, r2 = rebase(n + 1 if n < 15 else 13)
        if n < 15: c_step(a, 1, KVs, c_reads(0, 0, KVs), bar="top" if BARM > 1 else True, extra=r1)
        else: c_step(a, 1, KVs, tr, bar="top", place=[6, 6, 5, 5], extra=r1)
        trace(n)
    a.stamp("c_g1kv")
    a(f"s_lshr_b32 s{s}, s{sWID}, 1"); a(f"s_lshl_b32 s{s}, s{s}, 14"); a(f"s_and_b32 s{s+1}, s{sWID}, 1"); a(f"s_lshl_b32 s{s+1}, s{s+1}, 12"); a(f"s_add_u32 s{s}, s{s}, s{s+1}")
    a(f"s_add_u32 s{sSLOT}, s{s}, s{sOWN}")
    a(f"s_lshl_b32 s{s+1}, s{sJ}, s{sKSH}"); a(f"s_add_u32 s{s}, s{s}, s{s+1}"); a(f"s_lshl_b32 s{s+1}, s{sRB}, 20"); a(f"s_add_u32 s{s}, s{s}, s{s+1}")
    a(f"s_add_u32 s{s}, s{s}, s{sLK}"); a(f"s_add_u32 s{s+1}, s{s}, 8192")
    a(f"s_and_b32 s{s+2}, s{sL}, 1"); a(f"s_lshl_b32 s{s+2}, s{s+2}, 30"); a(f"v_add_u32 v{T0}, s{s+2}, v{vL16}")
    a(f"s_cmp_ge_u32 s{sWID}, 2"); a(f"s_cselect_b32 s{s+2}, 0, s{s+2}"); a(f"v_add_u32 v{T1}, s{s+2}, v{vL16}")
    for x in r2[1] + r2[3]: a(x)
    a("s_waitcnt lgkmcnt(0)")
    l = a.newlabel("Lmd"); a(f"s_cmp_ge_u32 s{sL}, 2"); a(f"s_cbranch_scc1 {l}"); a(f"v_readfirstlane_b32 s{sFAST}, v{MD}"); a.label(l)
    def qk(seg, tt, ab, cs):
        r = acc(seg, tt)
        for p in range(8):
            t = TM + 2 * (p % 4)
            a(f"v_pk_mul_f32 {vr(t,2)}, {vr(cs+2*p,2)}, {vr(ab,2)} op_sel:[0,1] op_sel_hi:[1,1]")
            a(f"v_pk_fma_f32 {vr(t,2)}, {vr(r+2*p,2)}, {vr(ab,2)}, {vr(t,2)} op_sel_hi:[1,0,1]")
            a(f"v_cvt_pk_bf16_f32 v{r+p}, v{t}, v{t+1}")
    def vv(tt):
        r = acc(2, tt)
        for p in range(8):
            t = TM + 2 * (p % 4)
            a(f"v_pk_mul_f32 {vr(t,2)}, {vr(VA+16+2*p,2)}, {vr(CV,2)} op_sel_hi:[1,0]")
            a(f"v_pk_fma_f32 {vr(t,2)}, {vr(r+2*p,2)}, {vr(VA+2*p,2)}, {vr(t,2)}")
            a(f"v_cvt_pk_bf16_f32 v{r+p}, v{t}, v{t+1}")
    def out(seg, tt):
        for f in range(2): a(f"buffer_store_dwordx4 {vr(acc(seg,tt)+4*f,4)}, v{T1 if tt else T0}, {sr(sWS)}, s{s+tt} offen offset:{(seg - 1) * 2048 + f * 1024} sc1")
    qk(1, 1, AB + 2, CK); out(1, 1)
    vv(1)
    for x in vtab(0): a(x)
    out(2, 1)
    qk(1, 0, AB, CK); out(1, 0)
    a("s_waitcnt lgkmcnt(0)")
    qb = lambda i: FR + 12 * ((i + 1) % 3)
    def qrd(i):
        b, ks = qb(i), i % 4
        return [f"ds_read_b128 {vr(b,4)}, v{AX+ks}", f"ds_read_b64_tr_b16 {vr(b+8,2)}, v{AW} offset:{ks*6144}", f"ds_read_b64_tr_b16 {vr(b+10,2)}, v{AW+1} offset:{ks*6144}",
                f"ds_read_b128 {vr(b+4,4)}, v{AX+ks} offset:4096"]
    for x in qrd(0) + qrd(1): a(x)
    vv(0); out(2, 0)
    a.stamp("c_g1epi")
    kv_flag(a, T2, 0, 0)
    a(f"s_mov_b32 s{s+2}, {QSCALE}")
    for k in range(4): a(f"v_mul_f32 v{QAB+k}, s{s+2}, v{AB+k}")
    a(f"v_add_u32 v{T0}, s{sSLOT}, v{vL16}")
    a(f"s_xor_b32 s{s+1}, s{sWID}, 2"); a(f"s_lshl_b32 s{s+1}, s{s+1}, 10"); a(f"s_add_u32 s{s+1}, s{s+1}, {QOFF}"); a(f"v_add_u32 v{T1}, s{s+1}, v{vL16}")
    for i in range(12):
        b = qb(i); R = qrd(i + 2) if i + 2 < 12 else []
        if i == QPOST: a("s_waitcnt vmcnt(0)"); a.post(T2, MI + 6, True); a.stamp("c_g1post")
        a(f"s_waitcnt lgkmcnt({4 if i < 11 else 0})")
        if i == 11: a("s_barrier")
        mfma32(a, acc(0, 0), b + 8, b, acc(0, 0))
        if (i + 2) % 4 == 0 and R:
            r1, r2 = rebase(13 + (i + 2) // 4)
            for x in r1[0]: a(x)
        for x in R[:2]: a(x)
        mfma32(a, acc(0, 1), b + 8, b + 4, acc(0, 1))
        for x in R[2:]: a(x)
        if (i + 2) % 4 == 0 and R:
            for x in r1[3] + r2[1] + r2[3]: a(x)
    TM = 140
    for seg in (1, 2):
        for tt in range(2):
            for f in range(2): a(f"ds_write_b128 v{T0}, {vr(acc(seg,tt)+4*f,4)} offset:{tt*8192 + (seg - 1) * 2048 + f * 1024}")
    a.stamp("c_g1end")
    qk(0, 1, QAB + 2, CQ)
    for f in range(2): a(f"ds_write_b128 v{T1}, {vr(acc(0,1)+4*f,4)} offset:{f*4096}")
    qk(0, 0, QAB, CQ)

Q, S0, KF, BD, BO, NM, SEL, OA, LS, MI = 24, 32, 176, 184, 200, 216, 224, 228, 244, 248
def att_common(a):
    s = sT[1]
    a(f"s_bfe_u32 s{s}, s{sWID}, 0x10001"); a(f"s_xor_b32 s{s}, s{s}, s{sWH}"); a(f"s_lshl_b32 s{s}, s{s}, 1"); a(f"s_add_u32 s{sCNT}, s{s}, s{sWH}")
    a(f"s_lshl_b32 s{s}, s{sCNT}, 13"); a(f"s_and_b32 s{s+1}, s{sWID}, 1"); a(f"s_lshl_b32 s{s+2}, s{s+1}, 12"); a(f"s_add_u32 s{sSLOT}, s{s}, s{s+2}")
    a(f"s_lshl_b32 s{s}, s{sRB}, 4"); a(f"s_add_u32 s{s}, s{s}, s{sCNT}"); a(f"s_lshl_b32 s{s}, s{s}, 16"); a(f"s_lshl_b32 s{s+2}, s{sJ}, 12"); a(f"s_add_u32 s{s}, s{s}, s{s+2}")
    a(f"s_lshl_b32 s{s+1}, s{s+1}, 11"); a(f"s_add_u32 s{s}, s{s}, s{s+1}"); a(f"s_add_u32 s{sXO}, s{s}, {RGN + OF}")
    sel_const(a, SEL, MI + 2)
    a(f"v_and_b32 v{MI+2}, 31, v{vLANE}"); a(f"v_lshrrev_b32 v{MI+3}, 5, v{vLANE}"); a(f"v_lshlrev_b32 v{MI+3}, 2, v{MI+3}"); a(f"v_sub_u32 v{MI+2}, v{MI+2}, v{MI+3}")
def kv_flag(a, v, back, lanes):
    s = sT[1]
    a(f"s_lshl_b32 s{s}, s{sJ}, 4"); a(f"s_add_u32 s{s}, s{s}, s{sRB}")
    if back: a(f"s_sub_u32 s{s}, s{s}, {back}")
    a(f"s_lshl_b32 s{s+4}, s{s}, 7"); a(f"s_lshl_b32 s{s+1}, s{sL}, 15"); a(f"s_add_u32 s{s+4}, s{s+4}, s{s+1}"); a(f"s_add_u32 s{s+4}, s{s+4}, {KVFL}")
    if lanes == "all4": a(f"v_and_b32 v{v}, 3, v{vLANE}"); a(f"v_lshl_add_u32 v{v}, v{v}, 3, s{s+4}")
    else:
        a(f"s_lshl_b32 s{s+1}, s{sWID}, 3"); a(f"s_add_u32 s{s+4}, s{s+4}, s{s+1}")
        if lanes: a(f"s_add_u32 s{s+4}, s{s+4}, {lanes*8}")
        a(f"v_mov_b32 v{v}, s{s+4}")
    a(f"s_and_b32 s{s}, s{s}, 15"); a(f"s_lshl_b32 s{s}, s{s}, 20"); a(f"s_lshl_b32 s{s+1}, s{sJ}, s{sKSH}"); a(f"s_add_u32 s{s}, s{s}, s{s+1}"); a(f"s_add_u32 s{s}, s{s}, s{sLK}")
def masks_A(a):
    s = sT[1]
    a(f"s_mov_b32 s{s}, 0xffff")
    for r in range(16):
        kk = 8 * (r >> 2) + (r & 3)
        a(f"v_subrev_u32 v{BO+r}, {kk}, v{MI+2}"); a(f"v_ashrrev_i32 v{BO+r}, 31, v{BO+r}")
    for r in range(16): a(f"v_and_b32 v{BD+r}, {BIG}, v{BO+r}"); a(f"v_xor_b32 v{BO+r}, {BIG}, v{BD+r}")
def masks_B(a):
    s = sT[1]
    a(f"s_mov_b32 s{s}, 0xffff")
    def bias(d, off):
        a(f"v_add_u32 v{d}, {off & 0xffffffff if off < -16 else off}, v{MI+2}"); a(f"v_and_b32 v{d}, 0xfffffff1, v{d}"); a(f"v_min_u32 v{d}, 1, v{d}")
        a(f"v_lshlrev_b32 v{d}, 31, v{d}"); a(f"v_ashrrev_i32 v{d}, 3, v{d}")
    for r in range(16):
        kk = 8 * (r >> 2) + (r & 3)
        bias(BD + r, -kk)
        if r >= 8: bias(BO + r, 32 - kk)
        else: a(f"v_mov_b32 v{BO+r}, {BIG}")
    for p in range(4, 8):
        a(f"v_ashrrev_i32 v{MI+4}, 31, v{BO+2*p}"); a(f"v_ashrrev_i32 v{MI+5}, 31, v{BO+2*p+1}")
        a(f"v_bfi_b32 v{NM+p}, s{s}, v{MI+4}, v{MI+5}"); a(f"v_not_b32 v{NM+p}, v{NM+p}")
def rowmax_finish(a, m, t):
    a(f"v_mov_b32 v{t}, v{m}"); a(f"v_permlane32_swap_b32 v{m}, v{t}"); a(f"v_max_f32 v{m}, v{m}, v{t}")
    a(f"v_sub_f32 v{m}, 0, v{m}")
def exp_tile(a, r, m, n=8):
    for p in range(n):
        a(f"v_pk_add_f32 {vr(r+2*p,2)}, {vr(r+2*p,2)}, {vr(m,2)} op_sel_hi:[1,0]")
    for p in range(n):
        a(f"v_exp_f32 v{r+2*p}, v{r+2*p}"); a(f"v_exp_f32 v{r+2*p+1}, v{r+2*p+1}")
        if p: a(f"v_cvt_pk_bf16_f32 v{r+p-1}, v{r+2*p-2}, v{r+2*p-1}")
    a(f"v_cvt_pk_bf16_f32 v{r+n-1}, v{r+2*n-2}, v{r+2*n-1}")
def att_finish(a):
    a(f"v_rcp_f32 v{MI+2}, v{LS}")
    for p in range(8): a(f"v_pk_mul_f32 {vr(OA+2*p,2)}, {vr(OA+2*p,2)}, {vr(MI+2,2)} op_sel_hi:[1,0]")
    for p in range(8): a(f"v_cvt_pk_bf16_f32 v{OA+p}, v{OA+2*p}, v{OA+2*p+1}")
    if WT0 & 1: a.stores([f"buffer_store_dwordx4 {vr(OA+4*f,4)}, v{vL16}, {sr(sWS)}, s{sXO} offen offset:{f*1024}" for f in range(2)])
    else:
        for f in range(2): a(f"buffer_store_dwordx4 {vr(OA+4*f,4)}, v{vL16}, {sr(sWS)}, s{sXO} offen offset:{f*1024}{STF}")
    a(f"s_lshl_b32 s{sT[5]}, s{sJ}, 1"); a(f"s_and_b32 s{sT[6]}, s{sWID}, 1"); a(f"s_add_u32 s{sT[5]}, s{sT[5]}, s{sT[6]}")
    tile_flag(a, MI, OFL, 8, 0, sCNT, f"s{sT[5]}")

def attention_A_exact(a):
    St = lambda u: S0 + 16 * u
    s = sT[1]; M = MI + 4
    a(f"s_lshl_b32 s{s+2}, s{sRB}, 2"); a(f"s_add_u32 s{s+2}, s{s+2}, s{sCNT}")
    a(f"s_lshl_b32 s{s}, s{sJ}, 15"); a(f"s_add_u32 s{s}, s{s}, s{sLK}"); a(f"s_and_b32 s{s+1}, s{sWID}, 1"); a(f"s_lshl_b32 s{s+1}, s{s+1}, 12")
    a(f"s_add_u32 s{s}, s{s}, s{s+1}"); a(f"v_add_u32 v{MI}, s{s}, v{vL16}")
    def ld(dst, u, f):
        a(f"s_add_i32 s{s}, s{s+2}, {u-8}"); a(f"s_max_i32 s{s}, s{s}, 0")
        a(f"s_lshr_b32 s{s+1}, s{s}, 2"); a(f"s_lshl_b32 s{s+1}, s{s+1}, 20"); a(f"s_and_b32 s{s}, s{s}, 3"); a(f"s_lshl_b32 s{s}, s{s}, 13"); a(f"s_add_u32 s{s}, s{s}, s{s+1}")
        for k in range(2): a(f"buffer_load_dwordx4 {vr(dst+4*k,4)}, v{MI}, {sr(sWS)}, s{s} offen offset:{(f+k)*1024} sc1")
    for u in range(9):
        ld(KF, u, 0); a("s_waitcnt vmcnt(0)")
        mfma32(a, St(u), KF, Q, BD if u == 8 else BO if u == 0 else "0"); mfma32(a, St(u), KF + 4, Q + 4, St(u))
        a("s_nop 7")
    fx = a.newlabel("Lfix")
    for u in range(8):
        a(f"s_cmp_ge_u32 s{s+2}, {8-u}"); a(f"s_cbranch_scc1 {fx}")
        for r in range(16): a(f"v_mov_b32 v{St(u)+r}, {BIG}")
    a.label(fx)
    a(f"v_max_f32 v{M}, v{St(0)}, v{St(0)+1}")
    for k in range(2, 144, 2): a(f"v_max3_f32 v{M}, v{M}, v{S0+k}, v{S0+k+1}")
    rowmax_finish(a, M, M + 1)
    for u in range(9):
        ld(KF, u, 2)
        exp_tile(a, St(u), M)
        a("s_waitcnt vmcnt(0)")
        mfma32(a, OA, KF, St(u), OA if u else "0"); mfma16(a, LS, SEL, St(u), LS if u else "0"); mfma32(a, OA, KF + 4, St(u) + 4, OA); mfma16(a, LS, SEL, St(u) + 4, LS)
        a("s_nop 7")

def fetch(a, back, base, attempt=False):
    s = sT[1]
    nf = a.newlabel("Lnofetch")
    if attempt: a(f"s_mov_b32 s{sMX}, 0")
    a(f"s_cmp_lt_u32 s{sRB}, {back}"); a(f"s_cbranch_scc1 {nf}")
    kv_flag(a, MI, back, "all4")
    a(f"s_andn2_b32 s{s+1}, 1, s{sWID}"); a(f"s_lshl_b32 s{s+1}, s{s+1}, 13")
    a(f"s_add_u32 s{s}, s{s}, s{s+1}"); a(f"v_add_u32 v{MI+1}, s{s}, v{vL16}")
    if attempt:
        ok = a.newlabel("Ltry")
        a(f"buffer_load_dwordx2 {vr(MI+4,2)}, v{MI}, {sr(sWS)}, 0 offen sc1"); a("s_waitcnt vmcnt(0)")
        a.flagtest(MI + 4, ok); a(f"s_branch {nf}"); a.label(ok)
        a(f"s_mov_b32 s{sMX}, 1")
    else: a.poll2(MI, 112, 116)
    for o in (20480, 16384, 4096, 0):
        a(f"s_add_u32 m0, s{s+1}, {base + o}"); a(f"s_mov_b32 s{s}, {o}")
        for k in range(4): a(f"buffer_load_dwordx4 v{MI+1}, {sr(sWS)}, s{s} offen offset:{k*1024} sc1 lds")
    a.label(nf)

def attention_A(a):
    SB_, PB, KB, VB = 32, 64, 80, 96
    Sx = lambda k: SB_ + 16 * (k & 1); Px = lambda k: PB + 8 * (k & 1); Kx = lambda k: KB + 8 * (k & 1); Vx = lambda k: VB + 8 * (k & 1)
    s = sT[1]
    AD = MI
    def rd(dst, off): return [f"ds_read_b128 {vr(dst,4)}, v{AD} offset:{off}", f"ds_read_b128 {vr(dst+4,4)}, v{AD} offset:{off+1024}"]
    def smf(k, C): return [f"v_mfma_f32_32x32x16_bf16 {vr(Sx(k),16)}, {vr(Kx(k),4)}, {vr(Q,4)}, {C}", f"v_mfma_f32_32x32x16_bf16 {vr(Sx(k),16)}, {vr(Kx(k)+4,4)}, {vr(Q+4,4)}, {vr(Sx(k),16)}"]
    def pv(k):
        L = [f"v_mfma_f32_32x32x16_bf16 {vr(OA,16)}, {vr(Vx(k),4)}, {vr(Px(k),4)}, {vr(OA,16)}", f"v_mfma_f32_16x16x32_bf16 {vr(LS,4)}, {vr(SEL,4)}, {vr(Px(k),4)}, {vr(LS,4)}",
             f"v_mfma_f32_32x32x16_bf16 {vr(OA,16)}, {vr(Vx(k)+4,4)}, {vr(Px(k)+4,4)}, {vr(OA,16)}", f"v_mfma_f32_16x16x32_bf16 {vr(LS,4)}, {vr(SEL,4)}, {vr(Px(k)+4,4)}, {vr(LS,4)}"]
        if DOTSUM:
            for h in range(2): L[2 * h + 1] = "\n".join(f"v_dot2_f32_bf16 v{LS + (i & 1)}, v{Px(k) + 4*h + i}, s{sMW}, v{LS + (i & 1)}" for i in range(4))
        return L
    mode = {"remote": False}
    def rdk(dst, k, o):
        if mode["remote"] and k >= 4: return [x.replace(f"v{AD} ", f"v{AD+1} ") for x in rd(dst, (8 - k) * 8192 + o)]
        return rd(dst, (4 - k) * 8192 + o)
    def nextS(k, special):
        if special is None: return smf(k + 1, "0")
        l0, l1 = a.newlabel("Lsp"), a.newlabel("Lsq")
        m0, m1 = smf(k + 1, "0"), smf(k + 1, vr(BO, 16))
        return ["\n".join([f"s_cmp_eq_u32 s{sCNT}, {special}", f"s_cbranch_scc1 {l0}", m0[0], f"s_branch {l1}", f"{l0}:", m1[0], f"{l1}:"]), m0[1]]
    def start(C, pend):
        for x in rdk(Kx(0), 0, 0) + rdk(Kx(1), 1, 0) + rdk(Vx(0), 0, 2048): a(x)
        a("s_waitcnt lgkmcnt(4)")
        for x in C: a(x)
    def body(k, havepv, last, special=None, dma=(), top=None):
        valu = []
        for p in range(8):
            valu += [f"v_exp_f32 v{Sx(k)+2*p}, v{Sx(k)+2*p}", f"v_exp_f32 v{Sx(k)+2*p+1}, v{Sx(k)+2*p+1}"]
            if p: valu.append(f"v_cvt_pk_bf16_f32 v{Px(k)+p-1}, v{Sx(k)+2*p-2}, v{Sx(k)+2*p-1}")
        valu.append(f"v_cvt_pk_bf16_f32 v{Px(k)+7}, v{Sx(k)+14}, v{Sx(k)+15}")
        ins = {}
        P = pv(k - 1) if havepv else []
        if top: top()
        else: a("s_waitcnt lgkmcnt(2)")
        if not last:
            S2 = nextS(k, special)
            ins[0] = [S2[0]]; ins[SAT2] = [S2[1]]; ins[5] = rdk(Kx(k + 2), k + 2, 0)
        for n, x in zip(PVAT, P): ins.setdefault(n, []).append(x)
        if not last: ins.setdefault(19, []).extend(rdk(Vx(k + 1), k + 1, 2048))
        for n, d in zip((9, 21), dma): ins.setdefault(n, []).extend(d)
        for n, x in enumerate(valu):
            for y in ins.get(n, []): a(y)
            a(x)
    def flush(k, last=False):
        a(f"s_waitcnt lgkmcnt({0 if last else 4})")
        for x in pv(k): a(x)
    l1 = a.wave_if("ge", 6)
    a(f"s_cmp_lg_u32 s{sMX}, 0"); a(f"s_cbranch_scc1 {l1}")
    fetch(a, 1, RB1); a.label(l1)
    for r in range(16): a(f"v_mov_b32 v{OA+r}, 0")
    for r in range(4): a(f"v_mov_b32 v{LS+r}, 0")
    a(f"s_mov_b32 s{sMW}, 0x3f803f80")
    a(f"s_add_u32 s{s}, s{sSLOT}, {OWN_A - 4*8192}"); a(f"v_add_u32 v{AD}, s{s}, v{vL16}")
    start(smf(0, vr(BD, 16)), False)
    p1 = a.newlabel("Lp1done"); ex = [a.newlabel("Lp1x") for _ in range(3)]
    for k in range(4):
        body(k, k > 0, k == 3)
        if k < 3: a(f"s_cmp_eq_u32 s{sCNT}, {k}"); a(f"s_cbranch_scc1 {ex[k]}")
    flush(3, True); a(f"s_branch {p1}")
    for k in range(3):
        a.label(ex[k]); flush(k); a(f"s_branch {p1}")
    a.label(p1)
    a.stamp("A_loc")
    l1 = a.wave_if("ge", 4); l2 = a.wave_if("lt", 6); fetch(a, 2, RB2); a.label(l2); a.label(l1)
    l1 = a.wave_if("ge", 6); a("s_waitcnt vmcnt(0)"); a.label(l1)
    a("s_waitcnt lgkmcnt(0)"); a("s_barrier")
    a.stamp("A_Z1")
    wbz = []
    if HOT and WBZ:
        t = Asm(); lz = a.newlabel("Lwbz"); t(f"s_cmp_lg_u32 s{sL}, 0"); t(f"s_cbranch_scc1 {lz}")
        srd(t, 40, pWB, 6291456); hot_slab(t, 40, 8, 112)
        t.label(lz); wbz = [x.strip() for x in t.lines]
    no1, no2, fin = a.newlabel("Lno1"), a.newlabel("Lno2"), a.newlabel("Lafin")
    m1 = [wo_one((0 if E2Z else 6) + 2 * m, True) for m in range(8 if E2Z else 5)]; m2 = [wo_one(16 + 2 * m, True) if 16 + 2 * m < LATE0 else [] for m in range(4)]
    a(f"s_cmp_eq_u32 s{sRB}, 0"); a(f"s_cbranch_scc1 {no1}")
    a(f"s_and_b32 s{s}, s{sSLOT}, 4096"); a(f"s_add_u32 s{s}, s{s}, {RB1 - 8192}"); a(f"v_add_u32 v{AD}, s{s}, v{vL16}"); a(f"v_add_u32 v{AD+1}, {RB2 - RB1}, v{AD}")
    mode["remote"] = True
    if APRIO: l1 = a.wave_if("ge", 6); a(f"s_setprio {APRIO}"); a.label(l1)
    def z2():
        l1 = a.wave_if("ge", 4); a("s_waitcnt vmcnt(4)"); a.label(l1)
        a.stamp("A_z2a")
        a("s_waitcnt lgkmcnt(2)"); a("s_barrier")
        a.stamp("A_z2b")
    def z3():
        a.stamp("A_z3a")
        a("s_waitcnt lgkmcnt(2)"); a("s_barrier")
    start(smf(0, "0"), False)
    body(0, False, False, dma=m1[0:2]); body(1, True, False, dma=m1[2:4]); body(2, True, False, dma=([m1[4], m1[5] + wbz] if E2Z else [m1[4], wbz]), top=z2)
    body(3, True, False, special=3, dma=m1[6:8])
    a(f"s_cmp_eq_u32 s{sRB}, 1"); a(f"s_cbranch_scc1 {no2}")
    ex = [a.newlabel("Lp3x") for _ in range(3)]
    for k in range(4, 8):
        if k == 4: body(k, True, False, special=2, top=z3, dma=[m2[0] + m2[1], m2[2] + m2[3]])
        elif k < 7: body(k, True, False, special=6 - k)
        else: body(k, True, True)
        if k < 7: a(f"s_cmp_eq_u32 s{sCNT}, {7-k}"); a(f"s_cbranch_scc1 {ex[k-4]}")
    flush(7, True); a(f"s_branch {fin}")
    for k in range(3):
        a.label(ex[k]); flush(4 + k); a(f"s_branch {fin}")
    a.label(no1)
    for d in m1:
        for x in d: a(x)
    a("s_barrier"); a("s_barrier")
    for d in m2:
        for x in d: a(x)
    a(f"s_branch {fin}")
    a.label(no2)
    flush(3)
    a("s_waitcnt lgkmcnt(0)"); a("s_barrier")
    for d in m2:
        for x in d: a(x)
    a.label(fin)
    a.stamp("A_fin")
    if APRIO: a("s_setprio 0")
    a("s_waitcnt lgkmcnt(0)")
    if DOTSUM:
        a(f"v_add_f32 v{LS}, v{LS}, v{LS+1}"); a(f"v_mov_b32 v{LS+1}, v{LS}"); a(f"v_permlane32_swap_b32 v{LS}, v{LS+1}"); a(f"v_add_f32 v{LS}, v{LS}, v{LS+1}")
    ok = a.newlabel("Laok")
    a(f"v_pk_mul_f32 {vr(MI+2,2)}, {vr(OA,2)}, 0")
    for p in range(1, 8): a(f"v_pk_fma_f32 {vr(MI+2,2)}, {vr(OA+2*p,2)}, 0, {vr(MI+2,2)}")
    a(f"v_add_f32 v{MI+2}, v{MI+2}, v{MI+3}"); a(f"v_add_f32 v{MI+2}, v{MI+2}, v{LS}")
    a(f"v_cmp_nle_f32 vcc, 0x21800000, v{MI+2}"); a(f"s_mov_b64 s[{s+1}:{s+2}], vcc"); a(f"v_cmp_nge_f32 vcc, 0x5d800000, v{MI+2}"); a(f"s_or_b64 vcc, vcc, s[{s+1}:{s+2}]")
    if FORCE_EXACT: a("s_mov_b64 vcc, -1")
    a(f"s_cbranch_vccz {ok}")
    attention_A_exact(a)
    a.label(ok)
    att_finish(a)

def halo_B(a):
    VB, KF = S0 + 32, S0 + 48
    s = sT[1]
    none, go = a.newlabel("Lbnone"), a.newlabel("Lbgo")
    a("s_waitcnt lgkmcnt(0)")
    a(f"s_cmp_eq_u32 s{sRB}, 0"); a(f"s_cbranch_scc1 {none}")
    kv_flag(a, MI + 1, 1, 2)
    a(f"s_add_u32 s{s+2}, s{s}, {3*8192}"); a(f"s_add_u32 s{s+2}, s{s+2}, s{sSLOT}")
    a.poll2(MI + 1, 120, 124)
    for d, o in ((KF + 8, 0), (KF + 12, 1024), (VB + 8, 3072)): a(f"buffer_load_dwordx4 {vr(d,4)}, v{vL16}, {sr(sWS)}, s{s+2} offen offset:{o} sc1")
    a(f"s_branch {go}")
    a.label(none)
    for r in list(range(KF + 8, KF + 16)) + list(range(VB + 8, VB + 12)): a(f"v_mov_b32 v{r}, 0")
    a.label(go)

def attention_B(a):
    SO, SP, VB, KF = S0, S0 + 16, S0 + 32, S0 + 48
    M = MI + 4; s = sT[1]
    a(f"s_add_u32 s{s}, s{sSLOT}, {OWN_B - 8192}"); a(f"v_add_u32 v{MI}, s{s}, v{vL16}")
    for d, o in ((KF, 8192), (KF + 4, 8192 + 1024), (VB, 8192 + 2048), (VB + 4, 8192 + 3072)): a(f"ds_read_b128 {vr(d,4)}, v{MI} offset:{o}")
    go = a.newlabel("Lbgo")
    a(f"s_cmp_eq_u32 s{sCNT}, 0"); a(f"s_cbranch_scc1 {go}")
    for d, o in ((KF + 8, 0), (KF + 12, 1024), (VB + 8, 3072)): a(f"ds_read_b128 {vr(d,4)}, v{MI} offset:{o}")
    a.label(go)
    l1 = a.wave_if("lt", 4)
    wo_dma(a, [x for x in BW3 if x < LATE0])
    masks_B(a)
    a(f"s_add_u32 s{s}, s{sRB}, s{sCNT}"); a(f"s_cmp_lg_u32 s{s}, 0"); a(f"s_cbranch_scc1 {go}b")
    for r in range(8, 16): a(f"v_mov_b32 v{BO+r}, {BIG}")
    a.label(go + "b")
    a(f"s_waitcnt vmcnt({len([x for x in BW3 if x < LATE0])})")
    assert sorted(list(BW1) + list(BW2) + list(BW3)) == list(range(0, 6)) + list(range(8, 24))
    a.label(l1)
    a.stamp("B_Z")
    a("s_waitcnt lgkmcnt(0)")
    mfma32(a, SO, KF, Q, BD); mfma32(a, SP, KF + 8, Q, BO); mfma32(a, SO, KF + 4, Q + 4, SO); mfma32(a, SP, KF + 12, Q + 4, SP)
    for r in range(8, 16): a(f"v_max_f32 v{SO+r}, v{SO+r}, v{SP+r}")
    a(f"v_max3_f32 v{M}, v{SO}, v{SO+1}, v{SO+2}"); a(f"v_max3_f32 v{M+1}, v{SO+3}, v{SO+4}, v{SO+5}")
    for k in range(6, 16, 2):
        m = M + ((k >> 1) & 1); a(f"v_max3_f32 v{m}, v{m}, v{SO+k}, v{SO+k+1}")
    a(f"v_max_f32 v{M}, v{M}, v{M+1}")
    rowmax_finish(a, M, M + 1)
    exp_tile(a, SO, M)
    for p in range(4, 8): a(f"v_and_b32 v{SP+p}, v{SO+p}, v{NM+p}"); a(f"v_xor_b32 v{SP+p-4}, v{SO+p}, v{SP+p}")
    mfma32(a, OA, VB, SO, "0"); mfma16(a, LS, SEL, SO, "0"); mfma32(a, OA, VB + 4, SP, OA); mfma16(a, LS, SEL, SO + 4, LS)
    mfma32(a, OA, VB + 8, SP + 4, OA)
    att_finish(a)

A0, OFR, WF2, GA = 24, 56, 120, 152
def gemm2(a):
    s = sT[1]; NB = G2L + 1; ND = G2D + 1
    assert OFR + 4 * ND <= WF2 and WF2 + 8 * NB <= GA
    a(f"s_lshl_b32 s{s}, s{sRB}, 4"); a(f"s_add_u32 s{s}, s{s}, s{sWID}"); a(f"s_lshl_b32 s{s}, s{s}, 16"); a(f"s_add_u32 s{sXO}, s{s}, {RGN + OF}")
    pre = []
    tile_flag(a, GA + 4, OFL, 8, 0, sWID, 31)
    mark = len(a.lines)
    a(f"buffer_load_dwordx2 {vr(GA+6,2)}, v{GA+4}, {sr(sWS)}, 0 offen sc1")
    a(f"v_mov_b32 v{GA}, v{vTR}"); a(f"v_xor_b32 v{GA+1}, 64, v{vTR}"); a(f"v_add_u32 v{GA+2}, 65536, v{GA}"); a(f"v_add_u32 v{GA+3}, 65536, v{GA+1}")
    for p in range(16):
        a(f"v_lshlrev_b32 v{A0+2*p}, 16, v{XRES+p}"); a(f"v_and_b32 v{A0+2*p+1}, 0xffff0000, v{XRES+p}")
    def ld(i):
        if i % 4 == 0: a(f"s_add_u32 s{s+3}, s{sJ}, {i//4}" if G2OWN else f"s_mov_b32 s{s+3}, {i//4}"); a(f"s_and_b32 s{s+3}, s{s+3}, 15"); a(f"s_lshl_b32 s{s+3}, s{s+3}, 12"); a(f"s_add_u32 s{sT[12]}, s{s+3}, s{sXO}")
        a(f"buffer_load_dwordx4 {vr(OFR+4*(i%ND),4)}, v{vL16}, {sr(sWS)}, s{sT[12]} offen offset:{(i%4)*1024}{LDF}")
    def rd(i):
        b = WF2 + 8 * (i % NB); hi = 2 * (i >= 32); o = (i & 31) * 2048
        return [f"ds_read_b64_tr_b16 {vr(b+4*c+2*hf,2)}, v{GA+hi+c} offset:{o + hf*1024}" for c in range(2) for hf in range(2)]
    for i in range(G2L):
        for x in rd(i): a(x)
    st = x_frags(a)
    tile_flag(a, 166, XFL, 7, 1, sWID, f"s{sJ}")
    c_setup(a, False, zero=False)
    a(f"s_lshl_b32 s{s}, s{sWID}, 12"); a(f"s_add_u32 s{s}, s{s}, {XB[0]}"); a(f"v_add_u32 v165, s{s}, v{vL16}")
    NOWN = 4 if G2OWN else 0
    if NOWN:
        t = G(False); a_, a = a, t
        for i in range(NOWN): ld(i)
        a = a_; a.lines[mark:mark] = t.lines
    def step(i, nld):
        b = WF2 + 8 * (i % NB); o = OFR + 4 * (i % ND)
        if G2ST and i in (1, 16, 32, 48): a.stamp(f"c_g2_{i}")
        R = rd(i + G2L) if i + G2L < 64 else []
        a(f"s_waitcnt vmcnt({nld - i - 1}) lgkmcnt({4 * (min(64, i + G2L) - i - 1)})")
        mfma32(a, A0, b, o, A0)
        for x in R[:2]: a(x)
        if i >= NOWN and i + G2D < 64: ld(i + G2D)
        if i == SLB: l1 = a.newlabel("Lnsl"); a(f"s_cmp_lg_u32 s{sL}, 0"); a(f"s_cbranch_scc1 {l1}"); a("s_barrier"); a.label(l1)
        if i == SAT or (SAT < 40 and i == 40): a("s_barrier")
        mfma32(a, A0 + 16, b + 4, o, A0 + 16)
        for x in R[2:]: a(x)
    for i in range(NOWN): step(i, NOWN + 1)
    a("s_waitcnt vmcnt(0)")
    ok = a.newlabel("Look"); a.flagtest(GA + 6, ok); a.poll2(GA + 4, 144, 148); a.label(ok); a.acquire()
    a.stamp("c_R")
    for i in range(NOWN, NOWN + G2D): ld(i)
    for i in range(NOWN, 64): step(i, min(64, i + G2D))
    a.stamp("c_g2end")
    a(f"s_cmp_eq_u32 s{sL}, 3"); a("s_cbranch_scc1 L_final")
    for f in range(4):
        for p in range(4 * f, 4 * f + 4): a(f"v_cvt_pk_bf16_f32 v{XRES+p}, v{A0+2*p}, v{A0+2*p+1}")
        if WT0 & 2: a.stores([st[f]])
        else: a(st[f])
        a(f"ds_write_b128 v165, {vr(XRES+4*f,4)} offset:{f*1024}")

def gen(stamps=False):
    a = G(stamps)
    s = sT[1]
    a("s_cmp_ge_u32 s2, 256"); a("s_cbranch_scc1 L_end")
    if stamps: a(f"s_memtime s[{sT0}:{sT0+1}]"); a("s_mov_b32 s70, -1"); a("s_mov_b32 s82, 0")
    if stamps or DBGT or PH: a("s_memrealtime s[80:81]"); a("s_mov_b32 s94, 0")
    a("s_load_dwordx16 s[48:63], s[0:1], 0"); a("s_load_dwordx2 s[64:65], s[0:1], 64")
    a("v_lshrrev_b32 v1, 6, v0"); a(f"v_readfirstlane_b32 s{sWID}, v1")
    a(f"v_and_b32 v{vLANE}, 63, v0"); a(f"v_lshlrev_b32 v{vL16}, 4, v{vLANE}")
    if CODEPF:
        l1 = a.wave_if("eq", 3)
        a("s_getpc_b64 s[40:41]")
        a.label("L_pc")
        a(f"s_lshr_b32 s{s}, s2, 3"); a(f"s_mul_i32 s{s}, s{s}, {CODEPF * 128}"); a(f"v_lshlrev_b32 v28, 7, v{vLANE}"); a(f"v_add_u32 v28, s{s}, v28")
        a(f"s_mov_b32 s{s}, L_end - L_pc"); a(f"v_min_u32 v28, s{s}, v28")
        a("v_mov_b32 v29, s41"); a("v_add_co_u32 v28, vcc, s40, v28"); a("v_addc_co_u32 v29, vcc, 0, v29, vcc")
        a(f"s_mov_b64 exec, {(1 << CODEPF) - 1}"); a(f"global_load_dword v{vDUM}, v[28:29], off"); a("s_mov_b64 exec, -1")
        a.label(l1)
    a(f"s_and_b32 s{s}, s2, 7"); a(f"s_lshr_b32 s{s+1}, s2, 3"); a(f"s_lshl_b32 s{sRB}, s{s}, 1"); a(f"s_and_b32 s{s}, s{s+1}, 1"); a(f"s_add_u32 s{sRB}, s{sRB}, s{s}")
    a(f"s_lshr_b32 s{sJ}, s{s+1}, 1"); a(f"s_mov_b32 s{sRM}, {RM0}"); a(f"s_and_b32 s{sROT}, s{sJ}, {RM0}")
    a(f"v_bfe_u32 v16, v{vLANE}, 4, 1"); a("v_lshlrev_b32 v16, 2, v16"); a(f"v_and_b32 v17, 7, v{vLANE}"); a("v_xor_b32 v16, v16, v17"); a(f"v_lshlrev_b32 v{vCH}, 4, v16")
    def common():
        srd(a, sWS, pWS, WS_SIZE); a(f"v_mov_b32 v28, {NONCE}")
        a(f"buffer_load_dwordx2 v[26:27], v28, {sr(sWS)}, 0 offen sc1")
        srd(a, sWO, pWOA, 2097152)
        a(f"s_mov_b32 s{sL}, 0"); a(f"s_mov_b32 s{sLK}, {RGN + KVA}"); a(f"s_mov_b32 s{sKSH}, 15"); a(f"s_mov_b32 s{sFAST}, 0"); a(f"s_mov_b32 s{sOWN}, {OWN_A}"); a(f"v_mov_b32 v{vSTAMP}, 0"); a("v_mov_b32 v7, 0")
        a(f"v_lshrrev_b32 v28, 5, v{vLANE}"); a("v_lshlrev_b32 v28, 2, v28"); a(f"v_bfe_u32 v29, v{vLANE}, 2, 2"); a("v_add_u32 v28, v28, v29")
        a(f"v_bfe_u32 v29, v{vLANE}, 4, 1"); a("v_lshlrev_b32 v29, 1, v29"); a(f"v_bfe_u32 v30, v{vLANE}, 1, 1"); a("v_add_u32 v29, v29, v30")
        a("v_bfe_u32 v30, v28, 1, 1"); a("v_lshlrev_b32 v30, 2, v30"); a("v_xor_b32 v29, v29, v30")
        a("v_lshlrev_b32 v28, 7, v28"); a("v_lshlrev_b32 v29, 4, v29"); a(f"v_and_b32 v30, 1, v{vLANE}"); a("v_lshlrev_b32 v30, 3, v30"); a(f"v_add3_u32 v{vTR}, v28, v29, v30")
        wo_setup(a)
        for r in range(HW, HF + 2): a(f"v_mov_b32 v{r}, 0")
    def nonce():
        a(f"v_readfirstlane_b32 s{sN0}, v26"); a(f"v_readfirstlane_b32 s{sN1}, v27")
        a(f"s_add_u32 s{sN0}, s{sN0}, 1"); a(f"s_add_u32 s{sN1}, s{sN1}, 16"); a(f"s_and_b32 s{sN1}, s{sN1}, 0xfffffff0")
        a(f"s_getreg_b32 s{s}, hwreg(HW_REG_XCC_ID, 0, 4)"); a(f"s_or_b32 s{sN1}, s{sN1}, s{s}")
    a(f"s_cmp_lt_u32 s{sWID}, 4"); a("s_cbranch_scc1 L_cstart")
    loader_setup_w(a); loader_setup_x(a, True)
    srd(a, sW, pWA, 6291456)
    def hot0():
        if HOT: hot_setup(a, 28)
        if HOT and HOT0: hot_issue(a, HOT0[0], HOT0[1], 28)
    if HOTF: hot0()
    if HOTX:
        a(f"s_and_b32 s{s}, s2, 7"); a(f"s_lshl_b32 s{s}, s{s}, 9"); a(f"s_lshr_b32 s{s+1}, s2, 3"); a(f"s_lshl_b32 s{s+1}, s{s+1}, 4"); a(f"s_add_u32 s{s}, s{s}, s{s+1}")
        a(f"s_and_b32 s{s+1}, s{sWID}, 3"); a(f"s_lshl_b32 s{s+1}, s{s+1}, 2"); a(f"s_add_u32 s{s}, s{s}, s{s+1}"); a(f"v_add_u32 v28, s{s}, v{vLANE}"); hot_line(a, 29, 28, sXS)
        a("s_mov_b64 exec, 15"); a(f"buffer_load_dword v{vDUM}, v29, {sr(sXS)}, 0 offen"); a("s_mov_b64 exec, -1")
    kstage(a, 0); dma_w(a, 0); dma_x(a, 0)
    common(); srd(a, sIO, pOUT, 4194304)
    if HOTS: hot_slab(a, sW, 4, 28)
    if not HOTF: hot0()
    kstage(a, 1); dma_w(a, 1); kstage(a, 2); dma_w(a, 2); kstage(a, 1); dma_x(a, 1)
    loader_pre(a)
    a(f"s_waitcnt vmcnt({16 + HOTS + (1 if HOT and HOT0 and not HOTF else 0)})"); nonce()
    a("s_barrier")
    a("s_branch L_lbody")
    a.label("L_cstart")
    io_addr(a, 24)
    a("s_waitcnt lgkmcnt(0)")
    srd(a, sIO, pX, 4194304)
    for f in range(4): a(f"buffer_load_dwordx4 {vr(XRES+4*f,4)}, v24, {sr(sIO)}, 0 offen offset:{f*32}")
    common(); srd(a, sW, pWA, 6291456)
    a("s_waitcnt vmcnt(0)")
    nonce(); half_swaps(a)
    x_stats(a, 24); stats_store(a, " sc1", 24)
    srd(a, sIO, pOUT, 4194304)
    a.stamp("c0_x0")
    tile_flag(a, 166, SFL, 7, 0, sWID, f"s{sJ}")
    c_setup(a, True); slab_setup(a, SLAB, 0)
    a(f"s_sub_u32 s{s}, s{sRB}, {PROG}"); a(f"s_max_i32 s{sH}, s{s}, 1"); a(f"s_lshl_b32 s{s}, {1 + 4 + 8 + (1 << POSTD)}, s{sH}"); a(f"s_or_b32 s{sMX}, s{sMX}, s{s}")
    a("s_waitcnt vmcnt(0)"); a.post(166, 168, True)
    a.label("L_cgo")
    consumer(a)
    a("s_branch L_att")
    a.label("L_lbody")
    loader(a, True)
    a("s_branch L_ldone")
    a.label("L_lbody2")
    loader(a, False)
    a.label("L_ldone")
    wo_dma(a, range(24, LATE0))
    att_common(a)
    a(f"s_bitcmp1_b32 s{sL}, 0"); a("s_cbranch_scc1 L_lB")
    masks_A(a)
    a("s_barrier")
    l1 = a.wave_if("ge", 6); fetch(a, 1, RB1, True); a.label(l1)
    a("s_branch L_attA")
    a.label("L_lB")
    masks_B(a)
    a("s_barrier")
    wo_dma(a, BW1)
    a("s_branch L_attB2")
    a.label("L_att")
    att_common(a)
    a(f"s_bitcmp1_b32 s{sL}, 0"); a("s_cbranch_scc1 L_attB")
    def qread():
        a(f"s_add_u32 s{s}, s{sWP}, {QOFF}"); a(f"v_add_u32 v{MI}, s{s}, v{vL16}")
        a(f"ds_read_b128 {vr(Q,4)}, v{MI}"); a(f"ds_read_b128 {vr(Q+4,4)}, v{MI} offset:4096")
    a.label("L_attA")
    a("s_waitcnt lgkmcnt(0)"); a("s_barrier")
    a.stamp("A_Y")
    l1 = a.wave_if("ge", 4); qread(); a.label(l1)
    l1 = a.wave_if("lt", 4); wo_dma(a, [] if E2Z else range(0, 6)); masks_A(a); a.label(l1)
    attention_A(a)
    a.stamp("A_end")
    a("s_branch L_attdone")
    a.label("L_attB")
    if HALOY: l1 = a.wave_if("lt", 2); halo_B(a); a.label(l1)
    a.label("L_attB2")
    a("s_waitcnt lgkmcnt(0)"); a("s_barrier")
    a.stamp("B_Y")
    if not HALOY: l1 = a.wave_if("lt", 2); halo_B(a); a.label(l1)
    l1 = a.wave_if("ge", 4); qread(); wo_dma(a, BW2); a("s_waitcnt lgkmcnt(0)"); wo_dma(a, [6, 7]); a.label(l1)
    attention_B(a)
    a.stamp("B_end")
    a.label("L_attdone")
    a("s_waitcnt vmcnt(0)"); a.post(MI, MI + 4, False, 0 if WT0 & 1 else None)
    a.label("L_P")
    for _ in range(IDLE): a("s_sleep 32")
    a("s_barrier")
    a.stamp("P")
    a(f"s_cmp_ge_u32 s{sWID}, 4"); a("s_cbranch_scc1 L_lnext")
    gemm2(a)
    next_layer(a)
    c_own_entry(a)
    a.label("L_lnext")
    assert LATE0 >= 22 and LATE0 % 2 == 0 and SAT < 40
    wo_dma(a, range(LATE0, 32))
    a(f"s_cmp_eq_u32 s{sL}, 3"); a("s_cbranch_scc1 L_lfinal")
    next_layer(a)
    l1 = a.newlabel("Lnsl"); a(f"s_cmp_lg_u32 s{sL}, 1"); a(f"s_cbranch_scc1 {l1}")
    slab_setup(a, WB[0], 4); slab_dma(a, WB[0], 4)
    if WOBW:
        a(f"s_lshl_b32 s{s}, s2, 2"); a(f"s_add_u32 s{s}, s{s}, s{sWID}"); a(f"s_sub_u32 s{s}, s{s}, 4"); a(f"s_lshl_b32 s{s}, s{s}, 11"); a(f"v_lshlrev_b32 v{S_}, 7, v{vLANE}")
        a("s_mov_b64 exec, 0xffff"); a(f"buffer_load_dword v{vDUM}, v{S_}, {sr(sWO)}, s{s} offen"); a("s_mov_b64 exec, -1")
    a("s_waitcnt vmcnt(0)"); a("s_barrier")
    slab_sums(a)
    a.label(l1)
    hot_burst(a, S_)
    loader_setup_w(a); loader_setup_x(a, False); loader_pre(a)
    a.stamp("ln_pre")
    a("s_barrier")
    a.stamp("ln_S")
    for n in range(3):
        if n and WPACE is not None: a(f"s_waitcnt vmcnt({WPACE})")
        if n == 1:
            assert WPACE == 0
            l1 = a.newlabel("Lnsl"); a(f"s_cmp_lg_u32 s{sL}, 1"); a(f"s_cbranch_scc1 {l1}"); a.post(HF, HD, True); a.label(l1)
        kstage(a, n); dma_w(a, n)
        if SAT < 40 and n == S2AT: a("s_waitcnt vmcnt(6)"); a("s_barrier")
    a.stamp("ln_S2")
    assert W2AT == "T" and SAT >= 24
    a.poll2(TA + 6, S_ + 24, S_ + 28); a.acquire()
    kstage(a, 1); dma_x(a, 1)
    a("s_barrier")
    a(f"s_cmp_ge_u32 s{sL}, 2"); a("s_cbranch_scc1 L_lbody2")
    a("s_branch L_lbody")
    a.label("L_lfinal")
    a("s_barrier")
    a("s_waitcnt vmcnt(0)"); a("s_barrier")
    if WBL:
        a(f"s_lshr_b32 s{s}, s2, 3"); a(f"s_add_u32 s{s}, s{s}, s{sWID}"); a(f"s_cmp_lg_u32 s{s}, 4"); a("s_cbranch_scc1 L_out")
        a("buffer_wbl2 sc1")
    a("s_branch L_out")
    a.label("L_final")
    io_addr(a, 160)
    for p in range(16): a(f"v_cvt_pk_bf16_f32 v{XRES+p}, v{A0+2*p}, v{A0+2*p+1}")
    half_swaps(a)
    for f in range(4): a(f"buffer_store_dwordx4 {vr(XRES+4*f,4)}, v160, {sr(sIO)}, 0 offen offset:{f*32}{OUTF}")
    a.label("L_out")
    a.stamp("f_end")
    if stamps:
        a("s_waitcnt lgkmcnt(0)"); a(f"s_sub_u32 s68, s82, s{80 if RT else sT0}"); a("s_and_b32 m0, s70, 63"); a(f"v_writelane_b32 v{vSTAMP}, s68, m0")
        a("s_memrealtime s[82:83]"); a("s_waitcnt lgkmcnt(0)"); a(f"v_writelane_b32 v{vSTAMP}, s80, 62"); a(f"v_writelane_b32 v{vSTAMP}, s82, 63")
        a(f"s_lshl_b32 s{s}, s2, 11"); a(f"s_lshl_b32 s{s+1}, s{sWID}, 8"); a(f"s_add_u32 s{s}, s{s}, s{s+1}"); a(f"s_add_u32 s{s}, s{s}, {STAMP}")
        a(f"v_lshlrev_b32 v16, 2, v{vLANE}"); a(f"buffer_store_dword v{vSTAMP}, v16, {sr(sWS)}, s{s} offen")
        if TRACE: a(f"s_add_u32 s{s}, s{s}, {1 << 20}"); a(f"buffer_store_dword v7, v16, {sr(sWS)}, s{s} offen")
    if DBGT:
        srd(a, 40, pDBG, 256)
        a("s_waitcnt vmcnt(0)"); a("s_memrealtime s[82:83]"); a("s_waitcnt lgkmcnt(0)"); a("s_not_b32 s80, s80")
        a("v_mov_b32 v22, 4"); a("v_mov_b32 v24, s82"); a("v_mov_b32 v25, s80"); a("s_mov_b64 exec, 1")
        l1 = a.wave_if("eq", 0)
        a(f"buffer_atomic_umax v24, v22, {sr(40)}, 0 offen"); a(f"buffer_atomic_umax v25, v22, {sr(40)}, 0 offen offset:4")
        a.label(l1); a("s_mov_b64 exec, -1")
    if DBGT >= 2:
        a("s_not_b32 s80, s80")
        if DBGT == 3: a("s_waitcnt vmcnt(0)"); a("s_barrier"); a("buffer_wbl2 sc1"); a("s_waitcnt vmcnt(0)")
        a.label("L_pad"); a("s_memrealtime s[82:83]"); a("s_waitcnt lgkmcnt(0)"); a("s_sub_u32 s82, s82, s80"); a("s_cmp_lt_u32 s82, 20000"); a("s_cbranch_scc1 L_pad")
    if PH:
        if len(PH) > 2: a(f"s_cmp_eq_u32 s2, {PH[2]}"); a("s_cselect_b32 s94, s94, 0")
        a("s_mul_i32 s94, s94, 4"); a("s_add_u32 s94, s94, 20000")
        a.label("L_pad2"); a("s_memrealtime s[82:83]"); a("s_waitcnt lgkmcnt(0)"); a("s_sub_u32 s82, s82, s80"); a("s_cmp_lt_u32 s82, s94"); a("s_cbranch_scc1 L_pad2")
    a(f"s_or_b32 s{s}, s2, s{sWID}"); a(f"s_cmp_lg_u32 s{s}, 0"); a("s_cbranch_scc1 L_end")
    srd(a, 40, pDBG, 256)
    a("v_mov_b32 v22, 0"); a(f"s_mov_b32 s{s}, 0")
    a.label("L_dbgpoll")
    a(f"buffer_load_dword v23, v22, {sr(40)}, 0 offen sc1"); a("s_waitcnt vmcnt(0)")
    a("v_cmp_gt_u32 vcc, 0x100, v23"); a("s_cbranch_vccz L_dbgok")
    a(f"s_add_u32 s{s}, s{s}, 1"); a(f"s_cmp_lt_u32 s{s}, {SPIN}"); a("s_cbranch_scc1 L_dbgpoll")
    a.label("L_dbgok")
    a(f"v_mov_b32 v22, {NONCE}"); a(f"v_mov_b32 v24, s{sN0}"); a(f"v_mov_b32 v25, s{sN1}")
    a("s_mov_b64 exec, 1")
    a(f"buffer_store_dwordx2 v[24:25], v22, {sr(sWS)}, 0 offen sc1")
    a.label("L_end")
    a("s_endpgm")
    body, n = hazard.fix(a.text())
    hdr = open(HERE + "/header.txt").read().rstrip("\n").split("\n")
    hdr.append("; @launch grid=(256,1,1) block=(512,1,1) lds=163840")
    return kernel_file(hdr, [(KNAME, body, 256, 100, 256)]), a.names, n

if __name__ == "__main__":
    for x in sys.argv[2:]:
        if "=" in x: k, v = x.split("="); globals()[k] = eval(v)
    txt, names, n = gen("stamps" in sys.argv)
    open(sys.argv[1], "w").write(txt)
    if names: open(sys.argv[1] + ".names", "w").write("\n".join(names))
    print("lines", txt.count("\n"), "nops inserted", n)
```

```python
import re

def regs(op):
    op = op.strip()
    op = op.lstrip("-")
    m = re.fullmatch(r"abs\((.*)\)", op) or re.fullmatch(r"\|(.*)\|", op)
    if m: op = m.group(1)
    m = re.fullmatch(r"([vsa])(\d+)", op)
    if m: return {(m.group(1), int(m.group(2)))}
    m = re.fullmatch(r"([vsa])\[(\d+):(\d+)\]", op)
    if m: return {(m.group(1), i) for i in range(int(m.group(2)), int(m.group(3)) + 1)}
    if op in ("vcc", "vcc_lo", "vcc_hi"): return {("vcc", 0)}
    if op in ("exec", "exec_lo", "exec_hi"): return {("exec", 0)}
    if op == "m0": return {("m0", 0)}
    return set()

TRANS = ("v_exp_", "v_log_", "v_rcp_", "v_rsq_", "v_sqrt_", "v_sin_", "v_cos_")

class I:
    def __init__(self, text):
        self.text = text
        t = text.split(";")[0].strip()
        self.label = t[:-1] if t.endswith(":") else None
        self.op = ""; self.d = set(); self.u = set(); self.ops = []
        if self.label or not t or t.startswith("."): return
        p = t.split(None, 1)
        self.op = p[0]
        rest = p[1] if len(p) > 1 else ""
        ops = [x.strip() for x in re.split(r",(?![^\[]*\])", rest)] if rest else []
        if ops:
            last = ops[-1].split()
            self.mods = " ".join(last[1:]); ops[-1] = last[0]
        else: self.mods = ""
        self.ops = ops
        o = self.op
        R = [regs(x) for x in ops]
        self.valu = o.startswith("v_") and not o.startswith("v_mfma")
        self.mfma = o.startswith("v_mfma")
        self.ds = o.startswith("ds_"); self.vmem = o.startswith("buffer_") or o.startswith("global_")
        self.salu = o.startswith("s_")
        if self.mfma:
            self.d = R[0]; self.A = R[1]; self.B = R[2]; self.C = R[3]; self.u = R[1] | R[2] | R[3]
            self.passes = 8 if "32x32" in o else 4
        elif self.valu:
            if o.startswith("v_cmp"):
                self.d = set(R[0]); self.u = set().union(*R[1:])
                if o.startswith("v_cmpx"): self.d |= {("exec", 0)}
            elif o.startswith("v_swap") or (o.startswith("v_permlane") and "swap" in o):
                self.d = R[0] | R[1]; self.u = R[0] | R[1]
            elif "_co_" in o or o.startswith("v_div_scale") or o.startswith("v_mad_u64"):
                self.d = R[0] | R[1]; self.u = set().union(*R[2:])
            else:
                self.d = set(R[0]); self.u = set().union(*R[1:]) if len(R) > 1 else set()
                if o.startswith(("v_fmac", "v_dot2c", "v_writelane", "v_pk_fmac")): self.u |= R[0]
        elif self.ds:
            if o.startswith(("ds_read", "ds_bpermute", "ds_permute", "ds_swizzle")): self.d = R[0]; self.u = set().union(*R[1:])
            else: self.u = set().union(*R)
        elif self.vmem:
            if o in ("buffer_wbl2", "buffer_inv"): pass
            elif "lds" in self.mods.split(): self.u = set().union(*R) | {("m0", 0)}; self.dma = True
            elif "load" in o: self.d = R[0]; self.u = set().union(*R[1:])
            else:
                self.u = set().union(*R); self.data = R[0] if o.startswith("buffer") else R[1]
                if "atomic" in o and "sc0" in self.mods.split(): self.d = R[0]
        elif self.salu:
            if o.startswith(("s_cmp", "s_bitcmp", "s_cbranch", "s_branch", "s_waitcnt", "s_barrier", "s_nop", "s_sleep", "s_setprio", "s_endpgm", "s_setpc")):
                self.u = set().union(*R) if R else set()
            else:
                self.d = set(R[0]) if R else set(); self.u = set().union(*R[1:]) if len(R) > 1 else set()
                if "saveexec" in o: self.d |= {("exec", 0)}
    def states(self):
        if self.label or not self.op: return 0
        if self.op == "s_nop": return int(self.ops[0], 0) + 1
        return 1

def need(p, c):
    n = 0
    if not p.op or not c.op: return 0
    V = lambda s: {r for r in s if r[0] in "va" and r[0] != "vcc"}
    S = lambda s: {r for r in s if r[0] in ("s", "vcc")}
    if p.valu:
        pv, ps = V(p.d), S(p.d)
        if c.mfma and pv & c.u: n = max(n, 2)
        if c.valu and c.op.startswith("v_permlane") and pv & c.u: n = max(n, 2)
        if c.valu and ("dpp" in c.op or "row_" in c.mods or "quad_perm" in c.mods) and pv & c.u: n = max(n, 2)
        if c.valu and c.op.startswith(("v_readlane", "v_readfirstlane")) and pv & c.u: n = max(n, 1)
        if p.op.startswith(TRANS) and (c.valu or c.mfma) and pv & c.u: n = max(n, 1)
        if p.op.startswith("v_dot") and (c.valu or c.vmem or c.ds or c.mfma) and pv & (c.u | c.d):
            same = c.op == p.op and not (pv & (regs(c.ops[1]) | regs(c.ops[2])))
            if not same: n = max(n, 3)
        if ps:
            if c.vmem and ps & c.u: n = max(n, 5)
            if (c.valu or c.mfma) and (ps & c.u or (("vcc", 0) in ps and c.op.startswith(("v_cndmask", "v_addc", "v_subb")))): n = max(n, 4 if c.op.startswith(("v_readlane", "v_writelane")) else 2)
            if c.salu and (ps & c.u or (("vcc", 0) in ps and "vcc" in c.op)): n = max(n, 1)
        if ("exec", 0) in p.d and (c.valu or c.mfma): n = max(n, 5)
        if "op_sel" in p.mods and not p.op.startswith("v_pk_") and c.valu and pv & (c.u | c.d): n = max(n, 1)
    if p.mfma:
        big, mid, war = (12, 10, 7) if p.passes == 8 else (8, 6, 3)
        if c.mfma:
            if p.d & (c.A | c.B): n = max(n, big)
            if p.d & c.C and not (p.d == c.C and p.passes == c.passes): n = max(n, mid)
            if p.d & c.d and not (p.d == c.d and p.passes == c.passes): n = max(n, big)
        elif c.valu or c.vmem or c.ds:
            if p.d & (c.u | c.d): n = max(n, big)
            if c.valu and p.C & c.d: n = max(n, war)
    if p.vmem and hasattr(p, "data") and ("x3" in p.op or "x4" in p.op) and V(p.data) & c.d: n = max(n, 2)
    if p.salu and ("m0", 0) in p.d and hasattr(c, "dma"): n = max(n, 1)
    if p.salu and ("m0", 0) in p.d and c.valu and ("m0", 0) in c.u: n = max(n, 1)
    return n

def fix(text, verbose=False):
    lines = text.split("\n")
    total = 0
    while True:
        ins = [I(l) for l in lines]
        lab = {x.label: i for i, x in enumerate(ins) if x.label}
        br = {}
        for i, x in enumerate(ins):
            if x.op.startswith(("s_cbranch", "s_branch")): br.setdefault(lab[x.ops[0]], []).append(i)
            if x.op == "s_call_b64": br.setdefault(lab[x.ops[1]], []).append(i)
        rets = [i for i, x in enumerate(ins) if x.op == "s_setpc_b64"]
        add = {}
        for i, c in enumerate(ins):
            if not c.op: continue
            worst = 0
            stack = [(i, 0)]; seen = {}
            while stack:
                k, dist = stack.pop()
                preds = []
                if k > 0 and not (ins[k-1].op in ("s_branch", "s_endpgm", "s_setpc_b64")): preds.append(k - 1)
                if k > 0 and ins[k-1].op == "s_call_b64": preds.append(min(r for r in rets if r > lab[ins[k-1].ops[1]]))
                if ins[k].label: preds += br.get(k, [])
                for q in preds:
                    p = ins[q]
                    if p.op:
                        n = need(p, c)
                        if n > dist: worst = max(worst, n - dist)
                    d2 = dist + p.states()
                    if d2 < 12 and seen.get(q, 99) > d2:
                        seen[q] = d2; stack.append((q, d2))
            if worst: add[i] = worst
        if not add: break
        out = []; last = -100
        for i, l in enumerate(lines):
            if i in add and i - last > 12:
                out.append(f"    s_nop {add[i]-1}"); total += 1; last = i
                if verbose: print("nop", add[i], "before", l.strip())
            out.append(l)
        lines = out
    return "\n".join(lines), total
```

```python
import sys, os, struct, math
HERE = os.path.dirname(os.path.abspath(__file__)); sys.path.insert(0, HERE + "/../tools")
from asmlib import *
import hazard

KB, MB = 1024, 1 << 20
ST, CSP, FL, RGN, XBUF, STAMP = 0, 256 * KB, 640 * KB, 2 * MB, 18 * MB, 70 * MB
XFL, RFL, NONCE, CFL, KFL, ST2 = FL, FL + 8 * KB, FL + 16 * KB, FL + 32 * KB, FL + 128 * KB, FL + 256 * KB
HALO, KVA = 0, 512 * KB
WS_SIZE = 72 * MB
XB = [32 * KB, 0, 16 * KB]; WQ = [80 * KB, 64 * KB, 72 * KB]; WKV = [48 * KB, 96 * KB, 112 * KB]
TAB, RB1, RB2, OWN, QX = 88 * KB, 32 * KB, 96 * KB, 128 * KB, 48 * KB
wseg = lambda n, seg: WQ[n % 3] if seg == 0 else WKV[n % 3] + (seg - 1) * 8192
wopos = lambda p: p * 4096 + (32 * KB if p >= 8 else 0)
BIG = 0xF149F2CA
QSCALE = struct.unpack("<I", struct.pack("<f", 32 ** -0.5 * math.log2(math.e)))[0]
WSTEP = 64 * 6144
SPIN = 1 << 18
OOB = 1 << 30
RT = 0; TRACE = 0; SKIP = []; FORCE_EXACT = 0; NL = 4; FORCE_SLOW = 0
HOT = 1; HOTD = 4; CODEPF = 13; BARM = 2; BARM0 = 8; G2D = 5; S3AT = 25; NREG = 0; WBL = 1; ROT0 = 0; WOHOT = 5
NORST = 0; RSTF = 0; RST = (3, 4, 5, 6, 7, 8, 9, 10); S1N = 4; S2N = 9; CLD = 10; WARM = 1; WARMAT = 3; LPRIO = 0; APRIO = 1; G2J = '0Sh1'; KPOST = 5
WSP = (1, 1, 1, 8); WOB = ([0, 1, 2, 3, 8, 9, 16, 17, 18, 19], [4, 5, 6, 7, 10, 11, 20, 21, 22, 23], [12, 13] + list(range(24, 32)), [14, 15]); W2B = 0; W2N = 1; FT8 = 8
RS = 1

sW, sWO, sWS, sXD, sXS, sWN = 4, 8, 12, 16, 88, 92
sWID, sRB, sJ, sL, sFAST, sN0, sN1 = 3, 20, 21, 22, 23, 24, 25
sT = list(range(26, 40)); sTS = 40; sOF = 44
pX, pWA, pWOA, pWB, pWOB, pOUT, pDBG, pWS = 48, 50, 52, 56, 58, 60, 62, 64
sT0 = 66
sTL, sRA, sKT, sWRW, sXSH, sMX, sMW, sKN = 71, 72, 74, 76, 77, 78, 79, 100
sM1, sM2 = 84, 86
sXO, sWOF, sNS, sW4 = 84, 85, 86, 87
sKH, sHB, sOB = 44, 46, 47
sCNT, sRG, sBU, sWR = 96, 97, 98, 99
sA1, sSRC, sOST, sKVG, sKVL, sHG, sXST, sOLD = 54, 55, 62, 63, 48, 49, 0, 1
vL16, vLANE, vTR, vSTAMP = 0, 1, 2, 6
vWO = [3, 4, 5, 211]
XRES = 8
ACC, FR = 24, 120
AX, AW, vST, vAB, vVT, vCQ, vCV, SEL, MK = 200, 202, 206, 207, 208, 209, 210, 212, 216
LX, LW, vHOT, vWP, WPRE, CSK = 8, 12, 18, 20, 138, 232
vDUM = 255

def vr(r, n): return f"v[{r}:{r+n-1}]"
def sr(r, n=4): return f"s[{r}:{r+n-1}]"
def M(d, A, B, C): return f"v_mfma_f32_16x16x32_bf16 {vr(d,4)}, {vr(A,4)}, {vr(B,4)}, {C if isinstance(C,str) else vr(C,4)}"
NAMES = dict(c=["x0", "g1start", "g1kv", "epi", "qend", "Y", "Z", "att", "o", "R", "g2end", "end"], l=["x1", "x2", "xf", "rf", "b16", "Y", "Z", "att", "o", "kv", "S3", "end", "B0", "cf", "sp"])

class G(Asm):
    def __init__(self, stamps):
        super().__init__(); self.stamps = stamps; self.tail = []
    def all(self, L):
        for x in L: self(x)
    def stamp(self, role, name, back=0):
        if not self.stamps or SKIP == 'all' or name in SKIP: return
        self(f"s_sub_u32 s68, s82, s{80 if RT else sT0}")
        self("s_memrealtime s[82:83]" if RT else "s_memtime s[82:83]")
        self("s_mov_b32 s69, m0"); self("s_mov_b32 m0, s70"); self(f"s_lshl_b32 s70, s{sL}, 4"); self(f"v_writelane_b32 v{vSTAMP}, s68, m0"); self("s_mov_b32 m0, s69")
        self(f"s_add_i32 s70, s70, {NAMES[role].index(name) - 16 * back}")
    def sif(self, reg, cond, imm):
        l = self.newlabel("Lif")
        self(f"s_cmp_{cond}_u32 s{reg}, {imm}"); self(f"s_cbranch_scc0 {l}")
        return l
    def stores(self, L):
        l0, l1 = self.newlabel("Lwt"), self.newlabel("Lwt")
        self(f"s_cmp_eq_u32 s{sFAST}, 0"); self(f"s_cbranch_scc1 {l0}")
        self.all(L); self.label(l1)
        self.tail += [l0 + ":"] + [x + " sc1" if x.startswith("buffer_store") else x for x in L] + [f"s_branch {l1}"]
    def post(self, vaddr, vt, cross):
        self(f"v_mov_b32 v{vt}, s{sN0}"); self(f"v_mov_b32 v{vt+1}, s{sN1}")
        self("s_mov_b64 exec, 1")
        x = f"buffer_store_dwordx2 {vr(vt,2)}, v{vaddr}, {sr(sWS)}, 0 offen"
        if cross: self(x + " sc1")
        else: self.stores([x])
        self("s_mov_b64 exec, -1")
    def flagwait(self, vaddr, vt):
        lp, ok = self.newlabel("Lpoll"), self.newlabel("Lok")
        test = [f"v_xor_b32 v{vt+2}, s{sN0}, v{vt}", f"v_xor_b32 v{vt+3}, s{sN1}, v{vt+1}", f"v_lshrrev_b32 v{vt+3}, 4, v{vt+3}", f"v_or_b32 v{vt+2}, v{vt+2}, v{vt+3}", f"v_cmp_ne_u32 vcc, 0, v{vt+2}"]
        self.all(test); self(f"s_cbranch_vccnz {lp}"); self.label(ok)
        self.tail += [lp + ":", f"s_mov_b32 s{sT[0]}, 0", lp + "b:", f"buffer_load_dwordx2 {vr(vt,2)}, v{vaddr}, {sr(sWS)}, 0 offen sc1", "s_waitcnt vmcnt(0)"] + test + \
                     [f"s_cbranch_vccz {ok}", f"s_add_u32 s{sT[0]}, s{sT[0]}, 1", f"s_cmp_lt_u32 s{sT[0]}, {SPIN}", f"s_cbranch_scc1 {lp}b", f"s_branch {ok}"]
    def acquire(self):
        l = self.sif(sFAST, "eq", 0); self("buffer_inv sc1"); self("s_waitcnt vmcnt(0)"); self.label(l)
    def marker(self, regs, t, kind):
        if kind == "h": assert len(regs) == 1; return [f"v_cmp_eq_u32 vcc, -1, v{regs[0]}"]
        if kind == "o": return [f"v_bitop3_b32 v{t}, v{regs[0]}, v{regs[1]}, 1 bitop3:0xa8", f"v_cmp_ne_u32 vcc, 0, v{t}"]
        if kind == "x": return [f"v_bitop3_b32 v{t}, v{regs[0]}, v{regs[1]}, v{regs[2]} bitop3:0x80", f"v_bitop3_b32 v{t}, v{t}, v{regs[3]}, 1 bitop3:0x80", f"v_cmp_eq_u32 vcc, 0, v{t}"]
        return [f"v_xor_b32 v{t}, s{sN0}, v{regs[0]}", f"v_xor_b32 v{t+1}, s{sN1}, v{regs[0]+1}", f"v_lshrrev_b32 v{t+1}, 4, v{t+1}", f"v_or_b32 v{t}, v{t}, v{t+1}", f"v_cmp_ne_u32 vcc, 0, v{t}"]
    def retry(self, regs, t, kind, again):
        lp, ok = self.newlabel("Lrt"), self.newlabel("Lok")
        test = self.marker(regs, t, kind)
        self.all(test); self(f"s_cbranch_vccnz {lp}"); self.label(ok)
        self.tail += [lp + ":", f"s_mov_b32 s{sT[0]}, 0", lp + "b:"] + list(again) + test + \
                     [f"s_cbranch_vccz {ok}", f"s_add_u32 s{sT[0]}, s{sT[0]}, 1", f"s_cmp_lt_u32 s{sT[0]}, {SPIN}", f"s_cbranch_scc1 {lp}b", f"s_branch {ok}"]
def bmul(d, vec, r):
    if r & 1: return f"v_pk_mul_f32 {d}, {vr(r-1,2)}, {vec} op_sel:[1,0] op_sel_hi:[1,1]"
    return f"v_pk_mul_f32 {d}, {vec}, {vr(r,2)} op_sel_hi:[1,0]"
def clean(r): return f"v_min_u32 v{r}, -2, v{r}"

def weave(main, fill):
    out = []; fill = list(fill)
    def short(x):
        c = hazard.I(x); d = 0
        for p in reversed(out[-12:]):
            p = hazard.I(p)
            if not p.op: continue
            if hazard.need(p, c) > d: return True
            if p.valu and c.valu and d == 0 and p.d & c.u: return True
            d += p.states()
        return False
    for x in main:
        while fill and short(x): out.append(fill.pop(0))
        out.append(x)
    return out, fill

class VM:
    def __init__(self, a): self.a = a; self.q = []; self.L = (0, 1, 2, 3)
    def add(self, tag, n=1, L=(0, 1, 2, 3)): self.q += [(tag, L)] * n
    def has(self, tag): return any(t == tag for t, L in self.q)
    def wait(self, tag, extra=""):
        a = self.a
        if not self.has(tag):
            if extra: a("s_waitcnt" + extra)
            return
        last = max(i for i, (t, L) in enumerate(self.q) if t == tag)
        self.q = self.q[last + 1:]
        n = {l: len([1 for t, L in self.q if t != "opt" and l in L]) for l in self.L}
        vals = sorted(set(n.values()), reverse=True); assert vals[0] <= 63
        done = a.newlabel("Lvm")
        for k, v in enumerate(vals):
            a(f"s_waitcnt vmcnt({v}){extra if k == 0 else ''}")
            if k + 1 < len(vals): a(f"s_bitcmp1_b32 {sum(1 << l for l in n if n[l] == v)}, s{sL}"); a(f"s_cbranch_scc1 {done}")
        if len(vals) > 1: a.label(done)

def sel_rows(a, d, mask, val):
    a(f"v_and_b32 v{d}, {mask}, v{vLANE}"); a(f"v_cmp_eq_u32 vcc, {val}, v{d}"); a(f"v_mov_b32 v{d+1}, 0x3f803f80"); a(f"v_cndmask_b32 v{d}, 0, v{d+1}, vcc")
    for i in range(1, 4): a(f"v_mov_b32 v{d+i}, v{d}")
def io_addr(a, v):
    s = sT[1]
    a(f"s_lshl_b32 s{s}, s{sRB}, 2"); a(f"s_add_u32 s{s}, s{s}, s{sWID}"); a(f"s_lshl_b32 s{s}, s{s}, 16"); a(f"s_lshl_b32 s{s+1}, s{sJ}, 7"); a(f"s_add_u32 s{s}, s{s}, s{s+1}")
    a(f"v_and_b32 v{v}, 15, v{vLANE}"); a(f"v_lshlrev_b32 v{v}, 11, v{v}"); a(f"v_bfe_u32 v{v+1}, v{vLANE}, 4, 1"); a(f"v_lshl_add_u32 v{v}, v{v+1}, 5, v{v}")
    a(f"v_lshrrev_b32 v{v+1}, 5, v{vLANE}"); a(f"v_lshlrev_b32 v{v+1}, 4, v{v+1}"); a(f"v_add3_u32 v{v}, v{v}, v{v+1}, s{s}"); a(f"v_add_u32 v{v+1}, 32768, v{v}")
def row_swaps(f): return [f"v_permlane16_swap_b32 v{XRES+4*f}, v{XRES+4*f+2}", f"v_permlane16_swap_b32 v{XRES+4*f+1}, v{XRES+4*f+3}"]
def set_bufs(a, cur):
    for d, ws in ((cur, NL & 1), (sXD, 1 - (NL & 1))):
        srd(a, d, pWS if ws else pOUT, 4194304, XBUF if ws else 0)
def swap_bufs(): return [f"s_xor_b64 {sr(sXS,2)}, {sr(sXS,2)}, {sr(sXD,2)}", f"s_xor_b64 {sr(sXD,2)}, {sr(sXS,2)}, {sr(sXD,2)}", f"s_xor_b64 {sr(sXS,2)}, {sr(sXS,2)}, {sr(sXD,2)}"]
def set_wo(a):
    a(f"s_bitcmp1_b32 s{sL}, 0"); a(f"s_cselect_b32 s{sWO}, s{pWOB}, s{pWOA}"); a(f"s_cselect_b32 s{sWO+1}, s{pWOB+1}, s{pWOA+1}")

def loader_setup_w(a, first):
    s = sT[1]; t = LW + 2
    a(f"v_lshrrev_b32 v{t}, 3, v{vLANE}"); a(f"v_and_b32 v{t+1}, 6, v{t}"); a(f"v_and_b32 v{t+2}, 7, v{vLANE}"); a(f"v_xor_b32 v{t+1}, v{t+1}, v{t+2}")
    if first:
        a(f"v_and_b32 v{t+2}, 4, v{t}"); a(f"v_add_u32 v{t}, v{t}, v{t+2}")
        a(f"s_lshr_b32 s{s}, s{sW4}, 1"); a(f"s_lshl_b32 s{s}, s{s}, 5"); a(f"s_and_b32 s{s+1}, s{sW4}, 1"); a(f"s_lshl_b32 s{s+1}, s{s+1}, 2"); a(f"s_add_u32 s{s}, s{s}, s{s+1}")
    else: a(f"s_lshl_b32 s{s}, s{sW4}, 4")
    a(f"s_mul_i32 s{s}, s{s}, 6144"); a(f"s_lshl_b32 s{s+1}, s{sJ}, 7"); a(f"s_add_u32 s{s}, s{s}, s{s+1}")
    a(f"v_mul_u32_u24 v{t}, 6144, v{t}"); a(f"v_lshlrev_b32 v{t+1}, 4, v{t+1}"); a(f"v_add3_u32 v{LW}, v{t}, v{t+1}, s{s}")
    for k in range(1, 6): a(f"v_add_u32 v{LW+k}, {(k&1)*((16 if first else 8)*6144 - 1024) + (k>>1)*2048}, v{LW}")
def loader_setup_x(a, first):
    s = sT[1]
    a(f"s_lshl_b32 s{s}, s{sRB}, 2"); a(f"s_add_u32 s{s}, s{s}, s{sW4}"); a(f"s_lshl_b32 s{s}, s{s}, 16")
    if first:
        a(f"v_lshrrev_b32 v{LX+1}, 4, v{vLANE}"); a(f"v_and_b32 v{LX+2}, 7, v{vLANE}"); a(f"v_xor_b32 v{LX+1}, v{LX+1}, v{LX+2}"); a(f"v_lshlrev_b32 v{LX+1}, 4, v{LX+1}")
        a(f"v_lshrrev_b32 v{LX+2}, 3, v{vLANE}"); a(f"v_lshlrev_b32 v{LX+2}, 11, v{LX+2}"); a(f"v_add3_u32 v{LX}, v{LX+1}, v{LX+2}, s{s}")
        a(f"v_xor_b32 v{LX+1}, 64, v{LX}"); a(f"v_add_u32 v{LX+2}, {2*15360}, v{LX}"); a(f"v_add_u32 v{LX+3}, {3*15360}, v{LX+1}"); a(f"v_add_u32 v{LX+1}, 15360, v{LX+1}")
    else:
        for k in range(4): a(f"v_add_u32 v{LX+k}, s{s}, v{vL16}")
ror4 = lambda t: (t >> 1) | ((t & 1) << 3)
def ktables(a, first):
    s = sT[1]; t = sT[2]
    a(f"s_lshr_b32 s{s}, s{sRB}, {RS}"); a(f"s_lshl_b32 s{s}, s{s}, {RS + 2}")
    C = sum(ror4(k) << (4 * k) for k in range(16)) if first else sum(ror4(k) << (4 * k - 4) for k in range(1, 16)); d = sKT if first else sKN
    a(f"s_mov_b32 s{t}, {C & 0xffffffff}"); a(f"s_mov_b32 s{t+1}, {C >> 32}"); a(f"s_lshr_b64 {sr(d,2)}, {sr(t,2)}, s{s}"); a(f"s_sub_u32 s{s}, {64 if first else 60}, s{s}")
    a(f"s_lshl_b64 {sr(t,2)}, {sr(t,2)}, s{s}"); a(f"s_or_b64 {sr(d,2)}, {sr(d,2)}, {sr(t,2)}")
    if not first: a(f"s_lshl_b64 {sr(d,2)}, {sr(d,2)}, 4")
    if not first or ROT0: a(f"s_mul_i32 s{s}, s{sJ}, 0x11111111"); a(f"s_xor_b32 s{d}, s{d}, s{s}"); a(f"s_xor_b32 s{d+1}, s{d+1}, s{s}")
def kidx(a, n, d, nxt=False): a(f"s_bfe_u32 s{d}, s{(sKN if nxt else sKT) + (n >> 3)}, {0x40000 + 4 * (n & 7)}")
def kstage(a, n, x=True, w=True):
    kidx(a, n, sT[1])
    if x: a(f"s_lshl_b32 s{sXO}, s{sT[1]}, s{sXSH}")
    if w: a(f"s_mul_i32 s{sWOF}, s{sT[1]}, {WSTEP}")
def dma_w(a, n, fill=(), segs=(0, 1, 2)):
    fill = list(fill); k = -(-len(fill) // 3)
    for seg in segs:
        a(f"s_add_u32 m0, s{sMW}, {wseg(n, seg)}"); a.all(fill[seg * k:(seg + 1) * k])
        for i in range(2): a(f"buffer_load_dwordx4 v{LW+2*seg+i}, {sr(sW)}, s{sWOF} offen offset:{i*1024} lds")
def dma_x(n, so=sXO): return [f"s_add_u32 m0, s{sMX}, {XB[n % 3]}"] + [f"buffer_load_dwordx4 v{LX+k}, {sr(sXS)}, s{so} offen offset:{k*1024} sc1 lds" for k in range(4)]
def touch(srd_, so, offs): return [f"s_buffer_load_dwordx2 {sr(sT[12],2)}, {sr(srd_)}, s{so} offset:{o + 60}" for o in offs]
def pre_w(m, so): return f"buffer_load_dwordx4 {vr(WPRE+4*m,4)}, v{LW+m%6}, {sr(sWN)}, s{so} offen offset:{(m&1)*1024}"
def hot_col(a, d, base):
    a(f"s_lshr_b32 s{d}, s{base}, 7"); a(f"s_sub_u32 s{d}, 3, s{d}"); a(f"s_and_b32 s{d}, s{d}, 7"); a(f"s_and_b32 s{d+1}, s{sJ}, 8"); a(f"s_add_u32 s{d}, s{d}, s{d+1}")
    a(f"s_bfe_u32 s{d+1}, s2, 0x40003"); a(f"s_lshl_b32 s{d+1}, s{d+1}, 2"); a(f"s_add_u32 s{d+1}, s{d+1}, s{sW4}")
def hot_setup(a, first):
    s = sT[1]; hot_col(a, s, sW)
    a(f"s_mul_i32 s{s+1}, s{s+1}, 6144"); a(f"s_lshl_b32 s{sHB}, s{s}, 7"); a(f"s_add_u32 s{sHB}, s{sHB}, s{s+1}")
    if first and not ROT0: a(f"s_mov_b64 {sr(sKH,2)}, {sr(sKT,2)}")
    else: a(f"s_xor_b32 s{s}, s{s}, s{sJ}"); a(f"s_mul_i32 s{s}, s{s}, 0x11111111"); a(f"s_xor_b32 s{sKH}, s{sKT}, s{s}"); a(f"s_xor_b32 s{sKH+1}, s{sKT+1}, s{s}")
def hot(n):
    s = sT[11]
    return [f"s_bfe_u32 s{s}, s{sKH + (n >> 3)}, {0x40000 + 4 * (n & 7)}", f"s_mul_i32 s{s}, s{s}, {WSTEP}", f"s_add_u32 s{s}, s{s}, s{sHB}"] + touch(sW, s, (0, 2048, 4096)) if HOT and n <= 15 else []
def warm(a, t):
    s = sT[1]
    a(f"s_lshl_b32 s{s}, s2, 3"); a(f"s_add_u32 s{s}, s{s}, s{sWID}"); a(f"v_lshlrev_b32 v{t}, 7, v{vLANE}")
    srd(a, sTS, pWOB, 2097152); a(f"s_lshl_b32 s{s+1}, s{s}, 10"); a(f"s_mul_i32 s{s}, s{s}, 3072")
    a("s_mov_b64 exec, 0xffffff"); a(f"buffer_load_dword v{vDUM}, v{t}, {sr(sWN)}, s{s} offen")
    a("s_mov_b64 exec, 0xff"); a(f"buffer_load_dword v{vDUM}, v{t}, {sr(sTS)}, s{s+1} offen"); a("s_mov_b64 exec, -1")
wohead = lambda p: 2 * ror4(p >> 1) + (p & 1)
def wo_piece(a, steps):
    s = sT[10]
    for p in steps:
        a(f"s_lshl_b32 m0, s{sW4}, 10"); a(f"s_add_u32 m0, m0, {wopos(p)}"); a(f"s_xor_b32 s{s}, s{sWR}, {wohead(p) << 16}")
        a(f"buffer_load_dwordx4 v{vWP}, {sr(sWO)}, s{s} offen lds")
def wo_whole(p0):
    s = sT[10]
    pre = [f"s_lshl_b32 m0, s{sWID}, 12", f"s_add_u32 m0, m0, {wopos(p0)}", f"s_xor_b32 s{s}, s{sWRW}, {wohead(p0) << 16}"]
    ld = [f"buffer_load_dwordx4 v{vWO[k]}, {sr(sWO)}, s{s} offen offset:{k*1024} lds" for k in range(4)]
    return [pre + [ld[0]], [ld[1]], [ld[2]], [ld[3]]]

XR, S_, G_, HR, HS, HD, TA, TMP, MRK, FT = 24, 72, 88, 40, 88, 100, 188, 120, 124, 240
vXF, vS2, vXP, vSA, vTA, vGA, vCW, vXW, vHA, vCP, vCF, vCQ_, vSP = TA, TA + 1, TA + 2, TA + 3, TA + 4, TA + 5, TA + 6, TA + 7, TA + 8, TA + 11, TA + 12, TA + 13, TA + 14
def loader_pre(a):
    s = sT[1]; t = S_
    a(f"v_and_b32 v{t}, 15, v{vLANE}"); a(f"v_lshrrev_b32 v{t+1}, 4, v{vLANE}")
    a(f"s_lshl_b32 s{s}, s{sL}, 4"); a(f"s_add_u32 s{s}, s{s}, s{sRB}"); a(f"s_lshl_b32 s{s+1}, s{s}, 7"); a(f"s_add_u32 s{s+1}, s{s+1}, {XFL}"); a(f"v_lshl_add_u32 v{vXF}, v{t}, 3, s{s+1}")
    a(f"s_lshl_b32 s{s+2}, s{sJ}, 3"); a(f"s_add_u32 s{s+1}, s{s+1}, s{s+2}"); a(f"v_mov_b32 v{vXP}, s{s+1}")
    a(f"s_lshl_b32 s{s}, s{s}, 11"); a(f"s_add_u32 s{s}, s{s}, {ST2}"); a(f"s_lshl_b32 s{s+1}, s{sW4}, 5"); a(f"v_and_b32 v{t+2}, 31, v{vLANE}"); a(f"v_add_u32 v{t+2}, s{s+1}, v{t+2}")
    a(f"v_lshl_add_u32 v{vS2}, v{t+2}, 4, s{s}"); a(f"v_lshlrev_b32 v{vTA}, 2, v{t+2}")
    a(f"s_lshl_b32 s{s+1}, s{sJ}, 7"); a(f"s_add_u32 s{s}, s{s}, s{s+1}"); a(f"v_and_b32 v{t+2}, 3, v{vLANE}"); a(f"v_lshrrev_b32 v{t+3}, 5, v{vLANE}"); a(f"v_lshl_add_u32 v{t+2}, v{t+2}, 1, v{t+3}")
    a(f"v_lshl_add_u32 v{vSP}, v{t+2}, 4, s{s}"); a(f"v_and_b32 v{t+2}, 28, v{vLANE}"); a(f"v_lshl_add_u32 v{vSP}, v{t+2}, 26, v{vSP}")
    a(f"s_lshl_b32 s{s}, s{sRB}, 4"); a(f"s_add_u32 s{s}, s{s}, s{sJ}"); a(f"s_lshl_b32 s{s}, s{s}, 10"); a(f"v_add_u32 v{vSA}, s{s}, v{vL16}"); assert ST == 0
    a(f"s_lshl_b32 s{s}, s{sL}, 2"); a(f"s_add_u32 s{s}, s{s}, s{sW4}"); a(f"s_lshl_b32 s{s}, s{s}, 4"); a(f"s_add_u32 s{s}, s{s}, s{sJ}"); a(f"s_lshl_b32 s{s}, s{s}, 7"); a(f"s_add_u32 s{s}, s{s}, {CFL}")
    a(f"v_lshl_add_u32 v{vCF}, v{t}, 3, s{s}"); a(f"s_lshl_b32 s{s+1}, s{sRB}, 3"); a(f"s_add_u32 s{s}, s{s}, s{s+1}"); a(f"v_mov_b32 v{vCQ_}, s{s}")
    a(f"s_lshl_b32 s{s}, s{sL}, 4"); a(f"s_add_u32 s{s}, s{s}, s{sJ}"); a(f"s_mul_i32 s{s}, s{s}, {16*768}"); a(f"s_mul_i32 s{s+1}, s{sW4}, 192"); a(f"s_add_u32 s{s}, s{s}, s{s+1}"); a(f"s_add_u32 s{s}, s{s}, {CSP}")
    a(f"v_min_u32 v{t+2}, 11, v{t}"); a(f"v_lshlrev_b32 v{t+2}, 4, v{t+2}"); a(f"v_add_u32 v{vCW}, s{s+1}, v{t+2}")
    a(f"v_mul_u32_u24 v{t+3}, 3072, v{t+1}"); a(f"v_add3_u32 v{vGA}, v{t+2}, v{t+3}, s{s}")
    a(f"s_mul_i32 s{s+1}, s{sRB}, 768"); a(f"s_add_u32 s{s}, s{s}, s{s+1}"); a(f"v_lshl_add_u32 v{vCP}, v{vLANE}, 2, s{s}")
    a(f"v_cmp_gt_u32 vcc, 48, v{vLANE}"); a(f"v_mov_b32 v{t+2}, {OOB}"); a(f"v_cndmask_b32 v{vCP}, v{t+2}, v{vCP}, vcc")
    a(f"v_add_u32 v{vXW}, s{sMX}, v{vL16}")
    sum_setup(a)
def sum_setup(a):
    s = sT[1]
    a(f"s_and_b32 s{sNS}, s{sRB}, {(1 << RS) - 1}"); a(f"s_add_u32 s{sNS}, s{sNS}, 3"); a(f"s_add_u32 s{s}, s{sRB}, s{sL}"); a(f"s_cmp_eq_u32 s{s}, 16"); a(f"s_cselect_b32 s{sNS}, 0, s{sNS}")
    a(f"s_cmp_eq_u32 s{sNS}, 4"); a(f"s_mov_b32 s{s+1}, {WQ[0]}"); a(f"s_cselect_b32 s{s+1}, {WQ[1]}, s{s+1}"); a(f"s_mov_b32 s{s+2}, {WKV[0] - 8192}"); a(f"s_cselect_b32 s{s+2}, {WKV[1] - 8192}, s{s+2}")
    for c in range(3):
        a(f"s_mul_i32 s{s}, s{sW4}, 3"); a(f"s_add_u32 s{s}, s{s}, {c}"); a(f"s_and_b32 s{s+3}, s{s}, 3"); a(f"s_lshl_b32 s{s+3}, s{s+3}, 5"); a(f"v_xor_b32 v{vHA+c}, s{s+3}, v{vTR}")
        a(f"s_lshr_b32 s{s}, s{s}, 2"); a(f"s_lshl_b32 s{s+3}, s{s}, 13"); a(f"s_add_u32 s{s+3}, s{s+3}, s{s+2}"); a(f"s_cmp_eq_u32 s{s}, 0"); a(f"s_cselect_b32 s{s+3}, s{s+1}, s{s+3}")
        a(f"v_add_u32 v{vHA+c}, s{s+3}, v{vHA+c}")
def loader_step(a):
    for v, d in ((vXF, 2048 - (RFL - XFL)), (vXP, 2048 - (RFL - XFL)), (vS2, 32768), (vSP, 32768)): a(f"v_add_u32 v{v}, {d & 0xffffffff}, v{v}")
    a(f"s_mov_b32 s{sNS}, 99")
    l = a.sif(sL, "eq", 1)
    for v, d in ((vCF, 8192), (vCQ_, 8192), (vGA, 16*16*768), (vCP, 16*16*768)): a(f"v_add_u32 v{v}, {d}, v{v}")
    sum_setup(a); loader_setup_x(a, False); a(f"s_mov_b64 {sr(sKT,2)}, {sr(sKN,2)}"); a(f"s_mov_b32 s{sXSH}, 12")
    a.label(l)
def colsum_sub(a):
    a.label("L_colsum")
    for c in range(3):
        for ks in range(2):
            for hf in range(2): a(f"ds_read_b64_tr_b16 {vr(HR+8*c+4*ks+2*hf,2)}, v{vHA+c} offset:{(4*ks+2*hf)*1024}")
    for c in range(3): sel_rows(a, HS + 4 * c, 15, 4 * c)
    a("s_waitcnt lgkmcnt(0)")
    for m in range(6): a(M(HD, HS + 4 * (m >> 1), HR + 4 * m, HD if m else "0"))
    a(f"buffer_store_dword v{HD}, v{vCP}, {sr(sWS)}, 0 offen sc1")
    a(f"s_setpc_b64 {sr(sRA,2)}")

def loader(a):
    s = sT[1]; S = S_
    vm = VM(a); ds = [False]
    look = lambda n: [f"ds_read_b128 {vr(XR+4*k,4)}, v{vXW} offset:{XB[n % 3] + k*1024}" for k in range(4)]
    def xcheck(n):
        a("s_waitcnt lgkmcnt(0)")
        t = Asm(); kidx(t, n, s); t(f"s_lshl_b32 s{s}, s{s}, 12")
        a.retry([XR + 4 * k for k in range(4)], XR + 1, "x", [x.strip() for x in t.lines] + dma_x(n, s) + ["s_waitcnt vmcnt(0)"] + look(n) + ["s_waitcnt lgkmcnt(0)"])
    def hook(n):
        l = a.sif(sNS, "eq", n); a(f"s_call_b64 {sr(sRA,2)}, L_colsum"); a.label(l); vm.add("opt")
    def bar(n):
        vm.wait(("st", n), " lgkmcnt(0)" if ds[0] else ""); a("s_barrier"); ds[0] = False
    def only(L, reg, cond, imm):
        l = a.newlabel("Lon"); return [f"s_cmp_{cond}_u32 s{reg}, {imm}", f"s_cbranch_scc0 {l}"] + L + [l + ":"]
    def lines(f):
        t = G(False); t.nlab = a.nlab + 1000 * (1 + len(a.lines)); f(t); a.tail += t.tail; return [x.strip() for x in t.lines]
    l0 = a.sif(sL, "lg", 0)
    kstage(a, 1, w=False); a.all(dma_x(1))
    kstage(a, 2); a.all(dma_x(2))
    a("s_waitcnt vmcnt(4)"); a.all(look(1))
    if not W2B: dma_w(a, 2, segs=range(W2N))
    xcheck(1); a.stamp("l", "x1")
    hook(0); a.label(l0)
    a("s_waitcnt vmcnt(10)")
    vm.q = []; vm.add(("x", 2), 4); vm.add(("st", 2), 6, (0,) if W2B else (0, 1, 2, 3))
    def finish_rows(t):
        for rot in (4, 8):
            for i in range(4): t(f"v_add_f32_dpp v{S+i}, v{S+i}, v{S+i} row_ror:{rot} row_mask:0xf bank_mask:0xf")
        t(f"v_permlane32_swap_b32 v{S}, v{S+2}"); t(f"v_permlane32_swap_b32 v{S+1}, v{S+3}")
        t(f"v_pk_add_f32 {vr(S,2)}, {vr(S,2)}, {vr(S+2,2)}")
        t(f"v_mov_b32 v{S+2}, v{S}"); t(f"v_mov_b32 v{S+3}, v{S+1}")
        t(f"v_permlane16_swap_b32 v{S}, v{S+2}"); t(f"v_permlane16_swap_b32 v{S+1}, v{S+3}")
        t(f"v_pk_add_f32 {vr(S,2)}, {vr(S,2)}, {vr(S+2,2)}")
        t(f"v_mul_f32 v{S+5}, 0xba800000, v{S}"); t(f"v_mul_f32 v{S+1}, 0x3a800000, v{S+1}")
        t(f"v_fma_f32 v{S+1}, -v{S+5}, v{S+5}, v{S+1}"); t(f"v_max_f32 v{S+1}, 0, v{S+1}"); t(f"v_add_f32 v{S+1}, 0x3727c5ac, v{S+1}")
        t(f"v_rsq_f32 v{S+4}, v{S+1}"); t(f"v_mov_b32 v{S+6}, s{sN0}"); t(f"v_mov_b32 v{S+7}, s{sN1}"); t(f"v_mul_f32 v{S+5}, v{S+5}, v{S+4}")
        t.stores([f"buffer_store_dwordx4 {vr(S+4,4)}, v{vSP}, {sr(sWS)}, 0 offen"])
    def sums(t):
        G = G_
        l = t.sif(sL, "lt", 2)
        for i in range(4): t(f"v_pk_add_f32 {vr(G+2*i,2)}, {vr(G+2*i,2)}, {vr(G+8+2*i,2)}")
        for i in range(2): t(f"v_pk_add_f32 {vr(CSK+2*i,2)}, {vr(G+2*i,2)}, {vr(G+4+2*i,2)}")
        for sw in ("16", "32"):
            for i in range(4): t(f"v_mov_b32 v{G+i}, v{CSK+i}")
            for i in range(4): t(f"v_permlane{sw}_swap_b32 v{CSK+i}, v{G+i}")
            for i in range(2): t(f"v_pk_add_f32 {vr(CSK+2*i,2)}, {vr(CSK+2*i,2)}, {vr(G+2*i,2)}")
        t.label(l)
        t(f"v_add_u32 v{S+4}, {TAB + 2048}, v{vCW}"); t(f"v_mov_b32 v{S+5}, s{sFAST}"); t(f"v_mov_b32 v{S+6}, {TAB + 2816}")
        t(f"ds_write_b128 v{S+4}, {vr(CSK,4)}"); t(f"ds_write_b32 v{S+6}, v{S+5}")
    s2ld = f"buffer_load_dwordx4 {vr(S,4)}, v{vS2}, {sr(sWS)}, 0 offen sc1"
    for n in range(1, 14):
        bar(n)
        if n == 1: a.all(only(only(lines(lambda t: t.post(vXP, FT, False)), sW4, "eq", 0) + ([] if W2B else lines(lambda t: dma_w(t, 2, segs=range(W2N, 3)))), sL, "lg", 0)); vm.add("opt")
        if n == 2: a(f"buffer_load_dwordx2 {vr(FT+4,2)}, v{vXF}, {sr(sWS)}, 0 offen sc1"); vm.add("XF")
        if n == 3:
            vm.wait("XF"); a.flagwait(vXF, FT + 4)
            l = a.sif(sL, "eq", 0)
            a(f"v_cmp_ne_u32 vcc, s{sN1}, v{FT+5}"); a("s_cmp_eq_u64 vcc, 0"); a(f"s_cselect_b32 s{sFAST}, {0 if FORCE_SLOW else 1}, 0"); a.label(l)
            a.acquire(); a.stamp("l", "xf")
        if n == S1N: a.all(only([f"buffer_load_dwordx4 {vr(S,4)}, v{vSA}, {sr(sWS)}, 0 offen sc1"], sW4, "eq", 3)); vm.add("opt")
        if n == S2N: a(s2ld); vm.add("S2")
        if n == CLD: a.all(only([f"buffer_load_dwordx2 {vr(FT+4,2)}, v{vCF}, {sr(sWS)}, 0 offen sc1"], sL, "lt", 2)); vm.add("CF", 1, (0, 1))
        if n == CLD + 1:
            l = a.sif(sL, "lt", 2); q = list(vm.q); vm.L = (0, 1)
            vm.wait("CF"); a.flagwait(vCF, FT + 4)
            for i in range(4): a(f"buffer_load_dwordx4 {vr(G_+4*i,4)}, v{vGA}, {sr(sWS)}, 0 offen offset:{i*768} sc1")
            a.label(l); vm.q = q; vm.L = (0, 1, 2, 3); vm.add("G", 4, (0, 1))
        kstage(a, n + 2); a.all(dma_x(n + 2)); vm.add(("x", n + 2), 4)
        chk = n <= 3
        if chk: l = a.sif(sL, "lg", 0); q = list(vm.q); vm.L = (1, 2, 3); vm.wait(("x", n + 1)); a.all(look(n + 1)); a.label(l); vm.q = q; vm.L = (0, 1, 2, 3)
        if n == 13: assert not vm.has("G"); sums(a)
        fill = []
        if n == S1N + 2: a.all(only(lines(finish_rows), sW4, "eq", 3)); vm.add("opt")
        if n == S2N + 2:
            assert not vm.has("S2")
            a.retry([S + 2], S + 4, "f", [s2ld, "s_waitcnt vmcnt(0)"])
            fill += [f"v_add_u32 v{S+4}, {TAB}, v{vTA}", f"v_add_u32 v{S+5}, v{S+4}, v{vTA}", f"ds_write_b32 v{S+4}, v{S}", f"ds_write_b32 v{S+4}, v{S+1} offset:512", f"ds_write_b64 v{S+5}, {vr(S,2)} offset:1024"]
        if HOT and WOHOT <= n < WOHOT + 6:
            if n == WOHOT: hot_col(a, s, sWO); a(f"s_lshl_b32 s{s}, s{s}, 7"); a(f"s_lshl_b32 s{s+1}, s{s+1}, 15"); a(f"s_add_u32 s{sT[9]}, s{s}, s{s+1}")
            fill += touch(sWO, sT[9], [k * 2048 for k in range(n - WOHOT, 16, 6)])
        if n >= 5: fill += hot(n + HOTD)
        if n == 5: fill += [f"s_lshl_b32 s{s}, s{sL}, 4", f"s_add_u32 s{s}, s{s}, s{sRB}", f"s_lshl_b32 s{s}, s{s}, 4", f"s_add_u32 s{s}, s{s}, s{sJ}", f"s_lshl_b32 s{s}, s{s}, 7"] + touch(sWS, s, [ST2])
        if n == FT8: fill += [f"s_lshl_b32 s{s}, s{sL}, 4", f"s_add_u32 s{s}, s{s}, s{sRB}", f"s_lshl_b32 s{s}, s{s}, 7"] + touch(sWS, s, [RFL])
        dma_w(a, n + 2, fill); vm.add(("st", n + 2), 6)
        if chk:
            l = a.sif(sL, "lg", 0); xcheck(n + 1); a.label(l)
            if n == 1: a.stamp("l", "x2")
        if n in (3, 4): hook(n)
        if n in RST and not NORST:
            k = RST.index(n); l = a.sif(sL, "eq", 0)
            P = [f"buffer_store_dwordx4 {vr(MRK + 4*(m >> 2),4)}, v{vL16}, {sr(sXD if m >> 2 else sTS)}, s{sOB} offen offset:{(m&3)*1024}" for m in range(8)][k::len(RST)]
            if RSTF: a.all([x + " sc1" for x in P])
            else: a.stores(P)
            vm.add("rst", len(P), (0,))
            if k < 2:
                a(f"s_lshl_b32 s{s}, s{sJ}, 2"); a(f"s_add_u32 s{s}, s{s}, s{sW4}"); a(f"s_lshl_b32 s{s}, s{s}, 10"); a(f"s_add_u32 s{s}, s{s}, s{sRG}"); a(f"s_add_u32 s{s}, s{s}, {HALO + k*64*KB}")
                a(f"buffer_store_dwordx4 {vr(MRK,4)}, v{vL16}, {sr(sWS)}, s{s} offen sc1"); vm.add("rst", 1, (0,)); assert n <= 4
            a.label(l)
        if WARM == 2 and 5 <= n <= 12:
            l = a.sif(sL, "eq", 0)
            a(f"s_lshl_b32 s{s}, s2, 2"); a(f"s_add_u32 s{s}, s{s}, s{sW4}")
            a(f"s_lshl_b32 s{s+3}, s{s}, 11"); a.all(touch(sWO, s + 3, [(2 * (n - 5) + k) * 128 for k in range(2)]))
            for k in range(2): a(f"s_load_dword s{sT[12]}, {sr(pWOB,2)}, s{s+3} offset:{(2 * (n - 5) + k) * 128}")
            a(f"s_mul_i32 s{s}, s{s}, 6144"); a.all(touch(sWN, s, [(6 * (n - 5) + k) * 128 for k in range(6)]))
            a.label(l)
        if n == 7:
            a.all(only(lines(lambda t: t.post(vCQ_, FT, True)), sL, "lt", 2)); vm.add("flag", 1, (0, 1))
            l = a.sif(sL, "eq", min(1, NL - 1)); a(f"s_or_b32 s{s}, s2, s{sW4}"); a(f"s_cmp_lg_u32 s{s}, 0"); a(f"s_cbranch_scc1 {l}")
            a(f"v_mov_b32 v{FT+2}, {NONCE}"); a.post(FT + 2, FT, True); a.label(l); vm.add("opt")
    assert not vm.has("G") and not vm.has("rst")
    def keep():
        for i in range(4): a(f"v_swap_b32 v{CSK+i}, v{CSK+4+i}")
    def rpost():
        a(f"v_add_u32 v{vXF}, {RFL - XFL}, v{vXF}"); a(f"v_add_u32 v{vXP}, {RFL - XFL}, v{vXP}")
        l = a.sif(sW4, "eq", 0); a.post(vXP, FT, False); a.label(l); vm.add("opt")
    q0 = list(vm.q)
    a("s_waitcnt lgkmcnt(0)")
    a(f"s_bitcmp1_b32 s{sL}, 0"); a("s_cbranch_scc1 L_lB")
    vm.L = (0, 2); wp = [0]
    def wo_l2(cnt):
        for p in range(wp[0], wp[0] + cnt):
            a(f"s_xor_b32 s{s}, s{sT[9]}, {wohead(p) << 16}"); a.all(touch(sWO, s, [k * 2048 for k in range(4)]))
        wp[0] += cnt
    a(f"s_and_b32 s{s}, s{sRB}, 1"); a(f"s_lshl_b32 s{s}, s{s}, 2"); a(f"s_add_u32 s{s}, s{s}, s{sW4}"); a(f"s_lshl_b32 s{s}, s{s}, 13"); a(f"s_lshl_b32 s{s+1}, s{sJ}, 7"); a(f"s_add_u32 s{s}, s{s}, s{s+1}"); a(f"s_add_u32 s{sT[9]}, s{s}, s{sWR}")
    wo_l2(WSP[0])
    l = a.sif(sL, "eq", 0); a(f"s_mov_b64 {sr(sXS,2)}, {sr(sTS,2)}"); loader_setup_w(a, False); a.label(l)
    bar(14)
    wo_l2(WSP[1])
    bar(15)
    rpost(); wo_l2(WSP[2])
    a("s_barrier")
    a.stamp("l", "b16")
    for r in range(NREG if NL > 1 else 0):
        kidx(a, r, s, True); a(f"s_mul_i32 s{s}, s{s}, {WSTEP}")
        for m in range(6 * r, 6 * r + 6): a(pre_w(m, s))
    keep(); masks_A(a); att_setup(a); wo_l2(WSP[3])
    a(f"s_lshl_b32 s{s}, s{sL}, 4"); a(f"s_add_u32 s{s}, s{s}, s{sJ}"); a(f"s_lshl_b32 s{s}, s{s}, 11"); a(f"s_add_u32 s{s}, s{s}, {KFL}")
    a(f"v_bfe_u32 v{S+1}, v{vLANE}, 2, 1"); a(f"v_add_u32 v{S+1}, s{sRB}, v{S+1}"); a(f"v_subrev_u32 v{S+1}, 2, v{S+1}"); a(f"v_min_u32 v{S+1}, s{sRB}, v{S+1}")
    a(f"v_and_b32 v{S+2}, 3, v{vLANE}"); a(f"v_lshl_add_u32 v{S+1}, v{S+1}, 4, v{S+2}"); a(f"v_lshl_add_u32 v{S+1}, v{S+1}, 3, s{s}")
    a(f"v_cmp_gt_u32 vcc, 16, v{vLANE}"); a(f"v_cndmask_b32 v{S+1}, v{vXF}, v{S+1}, vcc")
    a(f"s_cmp_lt_u32 s{sRB}, 2"); a(f"s_cselect_b32 s{s}, 0, {2*MB}"); a(f"s_sub_u32 s{s}, s{sRG}, s{s}")
    a(f"s_lshl_b32 s{s+1}, s{sJ}, 15"); a(f"s_add_u32 s{s}, s{s}, s{s+1}"); a(f"s_lshl_b32 s{s+1}, s{sW4}, 13"); a(f"s_add_u32 s{s}, s{s}, s{s+1}")
    a(f"s_add_u32 s{s+2}, s{s}, {KVA}"); a(f"s_add_u32 s{s+3}, s{s}, {KVA + 4096}")
    a.stamp("l", "rf")
    a(f"buffer_load_dwordx2 {vr(S+2,2)}, v{S+1}, {sr(sWS)}, 0 offen sc1"); a("s_waitcnt vmcnt(0)"); a.flagwait(S + 1, S + 2); a.acquire()
    a.stamp("l", "cf")
    for h in range(2):
        a(f"s_add_u32 m0, s{s+1}, {RB2 + h*4096}")
        for k in range(4): a(f"buffer_load_dwordx4 v{vL16}, {sr(sWS)}, s{s+2+h} offen offset:{k*1024} sc1 lds")
    a("s_waitcnt vmcnt(0)")
    a.stamp("l", "kv")
    if LPRIO != APRIO: a(f"s_setprio {APRIO}")
    a("s_branch L_attA")
    a.label("L_lB")
    vm.q = q0; vm.L = (1, 3); assert sorted(sum(WOB, [])) == list(range(32))
    bar(14)
    wo_piece(a, WOB[0]); vm.add("wo", len(WOB[0]))
    bar(15)
    rpost(); wo_piece(a, WOB[1])
    a("s_barrier")
    a.stamp("l", "b16")
    wo_piece(a, WOB[2]); keep()
    a(f"buffer_load_dwordx2 {vr(FT+4,2)}, v{vXF}, {sr(sWS)}, 0 offen sc1")
    a(f"s_lshl_b32 s{s}, s{sW4}, 10"); a(f"s_add_u32 s{s+1}, s{s}, {QX}"); a(f"v_add_u32 v{S}, s{s+1}, v{vL16}")
    for r in range(4): a(f"v_mov_b32 v{32+r}, 0")
    l = a.sif(sRB, "lg", 0)
    a(f"s_lshr_b32 s{s+1}, s{sL}, 1"); a(f"s_lshl_b32 s{s+1}, s{s+1}, 4"); a(f"s_add_u32 s{s+1}, s{s+1}, s{sJ}"); a(f"s_lshl_b32 s{s+1}, s{s+1}, 12"); a(f"s_add_u32 s{s}, s{s}, s{s+1}")
    a(f"s_add_u32 s{s}, s{s}, s{sRG}"); a(f"s_sub_u32 s{s}, s{s}, {MB - HALO}")
    get = [f"buffer_load_dwordx4 {vr(32,4)}, v{vL16}, {sr(sWS)}, s{s} offen sc1", "s_waitcnt vmcnt(0)"]
    a.all(get); a.retry([32], S + 1, "h", get)
    a.label(l)
    a(f"ds_write_b128 v{S}, {vr(32,4)}")
    a.stamp("l", "kv")
    a("s_waitcnt vmcnt(0)"); a.flagwait(vXF, FT + 4); a.acquire()
    a("s_waitcnt lgkmcnt(0)"); a("s_barrier")
    wo_piece(a, WOB[3])
    a("s_branch L_lnext")

def loader_next(a):
    s = sT[1]
    a.label("L_lnext")
    def spref(L):
        for n in L:
            kidx(a, n, s, True); a(f"s_lshl_b32 s{s}, s{s}, 2"); a(f"s_add_u32 s{s}, s{s}, s{sW4}"); a(f"s_lshl_b32 s{s}, s{s}, 1"); a(f"s_and_b32 s{s+1}, s{sRB}, 1"); a(f"s_add_u32 s{s}, s{s}, s{s+1}")
            a(f"s_mul_i32 s{s}, s{s}, {8*6144}"); a(f"s_lshl_b32 s{s+1}, s{sJ}, 7"); a(f"s_add_u32 s{s}, s{s}, s{s+1}")
            a.all(touch(sW, s, [k * 2048 for k in range(24)]))
    a(f"s_add_u32 s{sL}, s{sL}, 1")
    if APRIO: a("s_setprio 0")
    a(f"s_cmp_eq_u32 s{sL}, {NL}"); a("s_cbranch_scc1 L_lfinal")
    def xt():
        a.all(touch(sXS, sOB, [k * 128 for k in range(32)]))
        a(f"s_lshl_b32 s{s}, s{sRB}, 4"); a(f"s_add_u32 s{s}, s{s}, s{sJ}"); a(f"s_lshl_b32 s{s}, s{s}, 2"); a(f"s_add_u32 s{s}, s{s}, s{sW4}"); a(f"s_lshl_b32 s{s}, s{s}, 8"); a.all(touch(sWS, s, [0, 128]))
        a(f"s_lshl_b32 s{s}, s{sL}, 4"); a(f"s_add_u32 s{s}, s{s}, s{sRB}"); a(f"s_lshl_b32 s{s}, s{s}, 7"); a.all(touch(sWS, s, [XFL]))
    set_wo(a)
    a(f"s_cselect_b32 s{sW}, s{pWB}, s{pWA}"); a(f"s_cselect_b32 s{sW+1}, s{pWB+1}, s{pWA+1}"); a(f"s_cselect_b32 s{sWN}, s{pWA}, s{pWB}"); a(f"s_cselect_b32 s{sWN+1}, s{pWA+1}, s{pWB+1}")
    a.all(swap_bufs())
    for k, job in enumerate(G2J):
        if job == "S": a("s_waitcnt vmcnt(0)"); a("s_barrier")
        elif job == "x": xt()
        elif job == "h":
            for n in range(max([-1] + [int(c) for c in G2J if c.isdigit()]) + 1, HOTD + 5): a.all(hot(n))
        else: spref([int(job)])
        if k == 0: loader_step(a); hot_setup(a, False)
    a.stamp("l", "sp", 1)
    a(f"v_add_u32 v{S_}, s{sMW}, v{vL16}"); a(f"v_add_u32 v{S_+1}, {64*KB}, v{S_}")
    a("s_barrier")
    a.stamp("l", "S3", 1)
    for n in range(NREG, 2 + W2B): kstage(a, n, x=False); dma_w(a, n)
    for m in range(6 * NREG):
        o = wseg(m // 6, (m % 6) >> 1) + (m & 1) * 1024
        a(f"ds_write_b128 v{S_ + (o >= 64*KB)}, {vr(WPRE+4*m,4)} offset:{o % (64*KB)}")
    a("s_waitcnt lgkmcnt(0)" if NREG else f"s_waitcnt vmcnt({6 + 6*W2B})")
    a("s_barrier")
    a.stamp("l", "B0")
    a("s_branch L_lbody")
    a.label("L_lfinal")
    a("s_waitcnt vmcnt(0)"); a("s_barrier")
    if WBL:
        a(f"s_lshr_b32 s{s}, s2, 3"); a(f"s_add_u32 s{s}, s{s}, s{sW4}"); l = a.sif(s, "eq", 0); a("buffer_wbl2 sc1"); a.label(l)
    a("s_barrier")
    a("s_branch L_out")

def acc(j, i): return ACC + (j * 4 + i) * 4
xfr = lambda p, i: FR + p * 40 + 4 * i
wfr = lambda p, j: FR + p * 40 + 16 + 4 * j
ALL, KVS = (0, 1, 2, 3, 4, 5), (2, 3, 4, 5)
class LQ:
    def __init__(self, a): self.a = a; self.q = []; self.t = 0
    def issue(self, x):
        self.a(x); self.q.append((hazard.I(x).d, self.t))
    def need(self, regs, extra=""):
        hit = [k for k, (d, t) in enumerate(self.q) if d & regs]
        if not hit: return
        n = min(len(self.q) - 1 - hit[-1], len([1 for d, t in self.q if t > self.t - 6]), 15)
        self.a(f"s_waitcnt lgkmcnt({n})"); self.q = self.q[len(self.q) - n:]
    def drain(self, extra=""):
        if self.q or extra: self.a("s_waitcnt" + extra + (" lgkmcnt(0)" if self.q else ""))
        self.q = []
def rd_x(d, n, ks, i): return f"ds_read_b128 {vr(d,4)}, v{AX+ks} offset:{XB[n % 3] + i*2048}"
def rd_w(d, n, ks, j):
    o = wseg(n, j >> 1) - WKV[0]; hi = o >= 48 * KB
    return [f"ds_read_b64_tr_b16 {vr(d+2*hf,2)}, v{AW + 2*hi + (j&1)} offset:{o - hi*48*KB + (4*ks+2*hf)*1024}" for hf in range(2)]
def c_reads(p, n, ks, js):
    return [rd_x(xfr(p,0), n, ks, 0)] + rd_w(wfr(p,js[0]), n, ks, js[0]) + [rd_x(xfr(p,i), n, ks, i) for i in range(1, 4)] + sum((rd_w(wfr(p,j), n, ks, j) for j in js[1:]), [])
def serp(js): return [(j, i if k % 2 == 0 else 3 - i) for k, j in enumerate(js) for i in range(4)]
def c_step(lq, p, order, nxt, bar=None, init=False, fill=(), vm="", X=None, W=None, f0=None):
    a = lq.a; nxt, fill = list(nxt), list(fill); X = X or xfr; W = W or wfr
    b0 = bar or 0; gaps = max(1, min(len(nxt), len(order) - 4 - b0) if len(order) > 8 else len(order))
    done = 0
    for m, (j, i) in enumerate(order):
        if bar is not None and m == bar: lq.drain(vm); a("s_barrier")
        A, B = (W(p,j), X(p,i)) if j < 4 else (X(p,i), W(p,j))
        x = M(acc(j,i), A, B, "0" if init else acc(j,i)); lq.need(hazard.I(x).u); a(x)
        k = 0 if m < b0 else min(len(nxt), -(-(m - b0 + 1) * len(nxt) // gaps))
        for r in nxt[done:k]: lq.issue(r)
        if (k == done and m >= b0 and f0 is None) or (f0 is not None and m >= f0):
            for _ in range(1 if f0 is None else 2):
                if fill:
                    y = fill.pop(0)
                    if isinstance(y, str): lq.need(hazard.I(y).u); (lq.issue if y.startswith("ds_") else a)(y)
                    else: y()
        done = max(done, k); lq.t += 1
    assert done == len(nxt)
    return fill
def c_setup(a, first):
    s = sT[1]
    a(f"s_lshr_b32 s{s}, s{sWID}, 1"); a(f"s_lshl_b32 s{s}, s{s}, 13")
    if first:
        a(f"v_and_b32 v{AX}, 15, v{vLANE}"); a(f"v_bfe_u32 v{AX+1}, v{vLANE}, 1, 3"); a(f"v_lshrrev_b32 v{AW}, 4, v{vLANE}"); a(f"v_xor_b32 v{AX+1}, v{AX+1}, v{AW}")
        a(f"v_lshlrev_b32 v{AX}, 7, v{AX}"); a(f"v_lshlrev_b32 v{AX+1}, 4, v{AX+1}"); a(f"v_add3_u32 v{AX}, v{AX}, v{AX+1}, s{s}"); a(f"v_xor_b32 v{AX+1}, 64, v{AX}")
    else: a(f"v_add_u32 v{AX}, s{s}, v{vL16}"); a(f"v_add_u32 v{AX+1}, 1024, v{AX}"); a(f"v_and_b32 v{vST}, {2*OOB - 1}, v{vST}")
def c_once(a):
    s = sT[1]; t = 24
    a(f"s_and_b32 s{s}, s{sWID}, 1"); a(f"s_lshl_b32 s{s+1}, s{s}, 6"); a(f"v_xor_b32 v{AW}, s{s+1}, v{vTR}"); a(f"v_xor_b32 v{AW+1}, 32, v{AW}")
    for k in (0, 1): a(f"v_add_u32 v{AW+2+k}, {WKV[0] + 48*KB}, v{AW+k}")
    for k in (0, 1): a(f"v_add_u32 v{AW+k}, {WKV[0]}, v{AW+k}")
    a(f"v_and_b32 v{t}, 15, v{vLANE}"); a(f"v_lshrrev_b32 v{t+1}, 4, v{vLANE}")
    a(f"s_lshl_b32 s{s}, s{s}, 7"); a(f"s_add_u32 s{s}, s{s}, {TAB + 2048}"); a(f"v_lshl_add_u32 v{vCQ}, v{t+1}, 4, s{s}"); a(f"v_lshl_add_u32 v{vCV}, v{t}, 2, s{s}")
    a(f"s_lshr_b32 s{s}, s{sWID}, 1"); a(f"s_lshl_b32 s{s}, s{s}, 8"); a(f"s_add_u32 s{s+1}, s{s}, {TAB}"); a(f"v_lshl_add_u32 v{vVT}, v{t+1}, 4, s{s+1}")
    a(f"s_add_u32 s{s+1}, s{s+1}, s{s}"); a(f"v_lshl_add_u32 v{vAB}, v{t}, 3, s{s+1}")
    a(f"s_lshl_b32 s{s}, s{sRB}, 2"); a(f"s_add_u32 s{s}, s{s}, s{sWID}"); a(f"s_lshl_b32 s{s}, s{s}, 4"); a(f"s_add_u32 s{s}, s{s}, s{sJ}"); a(f"s_lshl_b32 s{sXST}, s{s}, 12")
    a(f"s_lshr_b32 s{s}, s{s}, 4"); a(f"s_lshl_b32 s{sOLD}, s{s}, 16"); a(f"s_lshl_b32 s{s}, s{s}, 12"); a(f"s_lshl_b32 s{s+1}, s{sJ}, 6"); a(f"s_add_u32 s{s}, s{s}, s{s+1}")
    a(f"v_and_b32 v{t+4}, 7, v{t}"); a(f"v_lshl_add_u32 v{vST}, v{t+4}, 3, s{s}"); a(f"v_lshrrev_b32 v{t+4}, 3, v{t}"); a(f"v_lshl_add_u32 v{vST}, v{t+4}, 10, v{vST}"); a(f"v_lshrrev_b32 v{t}, 2, v{t}"); a(f"v_cmp_eq_u32 vcc, v{t}, v{t+1}"); a(f"v_mov_b32 v{t}, {OOB}"); a(f"v_cndmask_b32 v{vST}, v{t}, v{vST}, vcc")
    for k in range(2): a(f"s_mov_b32 s{sM1+k}, 0xaaaaaaaa"); a(f"s_mov_b32 s{sM2+k}, 0xcccccccc")
    a(f"s_sub_u32 s{s}, s{sA1}, {OWN - 4*8192}"); a(f"s_add_u32 s{sKVL}, s{s}, {OWN}"); a(f"s_lshl_b32 s{s+1}, s{sJ}, 15"); a(f"s_add_u32 s{s}, s{s}, s{s+1}"); a(f"s_add_u32 s{s}, s{s}, s{sRG}"); a(f"s_add_u32 s{sKVG}, s{s}, {KVA}")
    a(f"s_lshl_b32 s{s}, s{sJ}, 1"); a(f"s_add_u32 s{s}, s{s}, s{sWID}"); a(f"s_sub_u32 s{s}, s{s}, 2"); a(f"s_lshl_b32 s{s}, s{s}, 11"); a(f"s_add_u32 s{s}, s{s}, s{sRG}")
    a(f"s_cmp_ge_u32 s{sWID}, 2"); a(f"s_cselect_b32 s{sHG}, s{s}, {OOB}")
VA, VBT, CK, AB, CQ, CV, TM, MD_ = 120, 136, 152, 232, 240, 248, 250, 199
t_ab = lambda i: f"ds_read_b64 {vr(AB+2*i,2)}, v{vAB} offset:{1024 + i*128}"
t_c = lambda j: f"ds_read_b128 {vr((CQ if j < 2 else CK) + 4*(j&1),4)}, v{vCQ} offset:{(j>>1)*256 + (j&1)*64}"
t_cv = lambda d: f"ds_read_b32 v{CV+d}, v{vCV} offset:{512 + d*64}"
t_v = lambda i: [f"ds_read_b128 {vr(VA+4*i,4)}, v{vVT} offset:{i*64}", f"ds_read_b128 {vr(VBT+4*i,4)}, v{vVT} offset:{512 + i*64}"]
def e_qk(j0, i):
    L = []
    for p in range(4):
        r = acc(j0 + (p >> 1), i) + 2 * (p & 1); c = (CQ if j0 == 0 else CK) + 2 * p; ab = vr(AB + 2 * i, 2)
        L.append([bmul("@2", vr(c,2), AB + 2 * i + 1), f"v_pk_fma_f32 @2, {vr(r,2)}, {ab}, @2 op_sel_hi:[1,0,1]", f"v_cvt_pk_bf16_f32 v{acc(j0,i)+p}, @0, @1"])
    return L
def e_v(d, i, dst):
    L = []
    for p in range(2):
        r = acc(4 + d, i) + 2 * p
        L.append([bmul("@2", vr(VBT+4*i+2*p,2), CV + d), f"v_pk_fma_f32 @2, {vr(r,2)}, {vr(VA+4*i+2*p,2)}, @2", f"v_cvt_pk_bf16_f32 v{dst+p}, @0, @1"])
    return L
def skew(items):
    T = []; out = []
    for x in items:
        if len(x) == 3 and "@" in x[0]: T.append([x, []])
        else: T[-1][1] += x
    sub = lambda x, k: x.replace("@2", vr(TM + 2 * (k % 3), 2)).replace("@0", f"v{TM + 2*(k%3)}").replace("@1", f"v{TM + 2*(k%3) + 1}")
    for k in range(len(T) + 3):
        if 0 <= k - 2 < len(T): out.append(sub(T[k-2][0][2], k - 2))
        if 0 <= k - 1 < len(T): out.append(sub(T[k-1][0][1], k - 1))
        if k < len(T): out.append(sub(T[k][0][0], k))
        if 0 <= k - 2 < len(T): out += T[k-2][1]
    return out
def emit(lq, L):
    for y in L:
        if not isinstance(y, str): y(); continue
        c = hazard.I(y)
        lq.need(c.u | (c.d if not y.startswith("ds_") else set()))
        (lq.issue if y.startswith("ds_") else lq.a)(y)
        lq.t += 0.3
def get_mode(a): return [f"v_readfirstlane_b32 s{sFAST}, v{TM+5}"]

GS = 232
def stats_mfma(): return [M(GS + 8*rt + 4*u, SEL if u else XRES + 8*rt + 4*k, XRES + 8*rt + 4*k, GS + 8*rt + 4*u if k else "0") for k in range(2) for rt in range(2) for u in range(2)]
def stats_out(a):
    for rt in range(2):
        g = GS + 8 * rt
        a(f"v_cndmask_b32 v{g}, v{g}, v{g+1}, {sr(sM1,2)}"); a(f"v_cndmask_b32 v{g+2}, v{g+2}, v{g+3}, {sr(sM1,2)}")
    for rt in range(2): g = GS + 8 * rt; a(f"v_cndmask_b32 v{g+5}, v{g}, v{g+2}, {sr(sM2,2)}")
    a.stores([f"buffer_store_dwordx2 {vr(GS+8*rt+4,2)}, v{vST}, {sr(sWS)}, 0 offen offset:{rt*2048}" for rt in range(2)])
def consumer(a):
    s = sT[1]; lq = LQ(a)
    a.label("L_centry")
    a.all(stats_mfma())
    a("s_waitcnt lgkmcnt(0)")
    a.label("L_cfirst")
    a("s_barrier")
    a.stamp("c", "g1start")
    if a.stamps and TRACE: a("s_memrealtime s[74:75]" if RT else "s_memtime s[74:75]")
    for r in c_reads(0, 0, 0, ALL): lq.issue(r)
    stats_out(a)
    def trace(idx):
        if not (a.stamps and TRACE): return
        a(f"s_sub_u32 s68, s74, s{80 if RT else sT0}"); a("s_memrealtime s[74:75]" if RT else "s_memtime s[74:75]")
        a(f"s_lshl_b32 s69, s{sL}, 4"); a(f"s_add_u32 s69, s69, s{sCNT}"); a(f"s_add_u32 m0, s69, {idx}"); a("v_writelane_b32 v7, s68, m0")
    S6, S4 = serp(ALL), serp(KVS)
    c_step(lq, 0, S6, c_reads(1, 0, 1, ALL), init=True, fill=[f"s_mov_b32 s{sCNT}, 0"] + swap_bufs())
    c_step(lq, 1, S6, c_reads(0, 1, 0, ALL), bar=BARM0, vm=" vmcnt(0)")
    trace(0)
    a.label("L_cloop")
    lq.drain()
    for n in (1, 2, 3):
        c_step(lq, 0, S6, c_reads(1, n, 1, ALL))
        c_step(lq, 1, S6, c_reads(0, n + 1, 0, ALL), bar=BARM, vm=" vmcnt(0)" if n == 2 else "", fill=[f"s_add_u32 s{sCNT}, s{sCNT}, 3", f"s_cmp_lt_u32 s{sCNT}, 12"] if n == 3 and not TRACE else [])
        trace(n)
    if TRACE: a(f"s_add_u32 s{sCNT}, s{sCNT}, 3"); a(f"s_cmp_lt_u32 s{sCNT}, 12")
    a("s_cbranch_scc1 L_cloop")
    a(f"s_bitcmp1_b32 s{sL}, 0"); a("s_cbranch_scc1 L_ctailB")
    q0 = list(lq.q); t0 = lq.t
    mode = [f"v_mov_b32 v{TM+5}, {TAB + 2816}", f"ds_read_b32 v{TM+5}, v{TM+5}"]
    c_step(lq, 0, S6, c_reads(1, 13, 1, KVS))
    for n in (13, 14):
        c_step(lq, 1, S4, c_reads(0, n + 1, 0, KVS), bar=0); trace(n - 12)
        c_step(lq, 0, S4, c_reads(1, n + 1, 1, KVS), fill=[f"v_add_u32 v{wfr(1,0)}, s{sKVL}, v{vL16}", f"s_add_u32 s{s}, s{sKVG}, 8192", mode[0]] if n == 14 else [])
    tr = [mode[1], t_c(2), t_c(3)] + [t_ab(i) for i in (2, 3, 0, 1)] + [t_cv(0), t_cv(1)] + t_v(2) + t_v(3) + t_v(0) + t_v(1) + [t_c(0), t_c(1)]
    c_step(lq, 1, S4, tr, bar=0); trace(3)
    a.stamp("c", "g1kv")
    vK = MD_
    a(f"v_mov_b32 v{vK}, v{wfr(1,0)}")
    def out(r, tt, f): return [f"buffer_store_dwordx4 {vr(r,4)}, v{vL16}, {sr(sWS)}, s{s if tt else sKVG} offen offset:{f*1024} sc1", f"ds_write_b128 v{vK}, {vr(r,4)} offset:{tt*8192 + f*1024}"]
    QB = [160, 120]
    QS = [(13, 1), (14, 0), (14, 1), (15, 0), (15, 1)]
    qx = lambda p, i: QB[p] + 4 * i; qw = lambda p, j: QB[p] + 16 + 4 * j
    def qrd(k): n, ks = QS[k]; p = k & 1; return [rd_x(qx(p,0), n, ks, 0)] + rd_w(qw(p,0), n, ks, 0) + [rd_x(qx(p,i), n, ks, i) for i in range(1, 4)] + rd_w(qw(p,1), n, ks, 1)
    it = []
    for tt in (1, 0):
        for h in range(2): it += e_qk(2, 2 * tt + h) + [out(acc(2, 2 * tt + h), tt, h)]
        if tt == 0: it += [qrd(0)]
        for d in range(2): it += e_v(d, 2 * tt, acc(4 + d, 2 * tt)) + e_v(d, 2 * tt + 1, acc(4 + d, 2 * tt) + 2) + [out(acc(4 + d, 2 * tt), tt, 2 + d)]
    emit(lq, get_mode(a) + skew(it))
    a.stamp("c", "epi")
    fl = [f"v_mul_f32 v{AB+k}, {QSCALE}, v{AB+k}" for k in range(8)] + [f"s_lshl_b32 s{s}, s{sWID}, 12", f"s_add_u32 s{s}, s{s}, {QX}", f"v_add_u32 v{vK}, s{s}, v{vL16}"]
    def kpost():
        a(f"s_lshl_b32 s{s+1}, s{sL}, 4"); a(f"s_add_u32 s{s+1}, s{s+1}, s{sJ}"); a(f"s_lshl_b32 s{s+1}, s{s+1}, 4"); a(f"s_add_u32 s{s+1}, s{s+1}, s{sRB}"); a(f"s_lshl_b32 s{s+1}, s{s+1}, 4"); a(f"s_add_u32 s{s+1}, s{s+1}, s{sWID}")
        a(f"s_lshl_b32 s{s+1}, s{s+1}, 3"); a(f"s_add_u32 s{s+1}, s{s+1}, {KFL}"); a(f"v_mov_b32 v184, s{s+1}"); a("s_waitcnt vmcnt(0)"); a.post(184, 186, True)
    for k in range(5):
        if k == KPOST: kpost()
        o = serp((0, 1)) if k < 4 else [(0, 2), (1, 2), (1, 3), (0, 3), (0, 0), (1, 0), (1, 1), (0, 1)]
        r = c_step(lq, k & 1, o, qrd(k + 1) if k < 4 else [], X=qx, W=qw, fill=fl if k == 4 else [], f0=0 if k == 4 else None)
    assert not r
    if KPOST == 5: kpost()
    a.stamp("c", "qend")
    t = Asm(); att_setup(t); su = [x.strip() for x in t.lines]
    emit(lq, su + skew(e_qk(0, 2) + [[f"ds_write_b128 v{vK}, {vr(acc(0,2),4)}"]] + e_qk(0, 3) + [[f"ds_write_b128 v{vK}, {vr(acc(0,3),4)} offset:1024"]] + e_qk(0, 0) + e_qk(0, 1)))
    if KPOST == 6: kpost()
    a("s_branch L_attA")
    a.label("L_ctailB")
    lq.q = q0; lq.t = t0
    for n in (13, 14, 15):
        c_step(lq, 0, S6, c_reads(1, n, 1, ALL), fill=[mode[0], f"s_lshl_b32 s{s}, s{sWID}, 11", f"s_add_u32 s{s}, s{s}, {QX}", f"v_add_u32 v{vWO[1]}, s{s}, v{vL16}", f"v_add_u32 v{vWO[2]}, s{sHG}, v{vL16}", f"s_add_u32 s{sHG}, s{sHG}, {64*KB}"] if n == 15 else [])
        if n < 15: c_step(lq, 1, S6, c_reads(0, n + 1, 0, ALL), bar=BARM); trace(n - 12)
    attention_B(a, lq, mode[1])

def d_qk(a, v):
    a(f"v_and_b32 v{v}, 15, v{vLANE}"); a(f"v_lshrrev_b32 v{v+1}, 4, v{vLANE}"); a(f"v_lshlrev_b32 v{v+1}, 2, v{v+1}"); a(f"v_sub_u32 v{v}, v{v}, v{v+1}")
def masks_A(a):
    s = sT[1]; t = MK + 8
    d_qk(a, t)
    a(f"s_cmp_lt_u32 s{sRB}, 2"); a(f"s_cselect_b32 s{s}, 0, -1")
    for r in range(4): a(f"v_subrev_u32 v{MK+r}, {r}, v{t}")
    for r in range(4): a(f"v_ashrrev_i32 v{MK+r}, 31, v{MK+r}")
    for r in range(4): a(f"v_and_b32 v{MK+r}, {BIG}, v{MK+r}")
    for r in range(4): a(f"v_and_b32 v{MK+4+r}, s{s}, v{MK+r}")
    for r in range(4): a(f"v_xor_b32 v{MK+4+r}, {BIG}, v{MK+4+r}")
    for r in range(4): a(f"v_mov_b32 v{MK+8+r}, 0")
def masks_B(a):
    s = sT[1]; t = MK + 12
    d_qk(a, t)
    for r in range(4): a(f"v_subrev_u32 v{MK+8+r}, {r}, v{t}")
    for r in range(4): a(f"v_lshlrev_b32 v{MK+4+r}, 31, v{MK+8+r}")
    for r in range(4): a(f"v_or_b32 v{MK+r}, v{MK+4+r}, v{MK+8+r}"); a(f"v_not_b32 v{MK+8+r}, v{MK+8+r}")
    for r in range(4): a(f"v_or_b32 v{MK+4+r}, v{MK+4+r}, v{MK+8+r}")
    for r in range(8): a(f"v_ashrrev_i32 v{MK+r}, 31, v{MK+r}")
    a(f"s_mov_b32 s{s}, 0xffff")
    for p in range(4): q = MK + (4 if p < 2 else 0) + 2 * (p & 1); a(f"v_bfi_b32 v{MK+8+p}, s{s}, v{q}, v{q+1}")
    for p in range(4): a(f"v_not_b32 v{MK+8+p}, v{MK+8+p}")
    for r in range(8): a(f"v_and_b32 v{MK+r}, {BIG}, v{MK+r}")
    a(f"s_lshr_b32 s{s}, s{sWID}, 1"); a(f"s_or_b32 s{s}, s{s}, s{sRB}"); a(f"s_cmp_eq_u32 s{s}, 0"); a(f"s_cselect_b32 s{s}, {BIG}, 0")
    for r in range(4): a(f"v_or_b32 v{MK+12+r}, s{s}, v{MK+4+r}")
def att_once(a):
    s = sT[1]
    a(f"s_and_b32 s{s}, s{sWID}, 2"); a(f"s_lshr_b32 s{s+1}, s{sWID}, 2"); a(f"s_add_u32 s{sTL}, s{s}, s{s+1}"); a(f"s_and_b32 s{s}, s{sWID}, 1")
    a(f"s_lshl_b32 s{s+1}, s{sTL}, 1"); a(f"s_add_u32 s{s+1}, s{s+1}, s{s}"); a(f"s_lshl_b32 s{s+1}, s{s+1}, 12"); a(f"s_add_u32 s{sA1}, s{s+1}, {OWN - 4*8192}")
    a(f"s_lshl_b32 s{s+1}, s{sJ}, 1"); a(f"s_add_u32 s{s}, s{s}, s{s+1}"); a(f"s_lshl_b32 s{s}, s{s}, 11"); a(f"s_lshl_b32 s{s+1}, s{sTL}, 16"); a(f"s_add_u32 s{s}, s{s}, s{s+1}"); a(f"s_lshl_b32 s{s+1}, s{sRB}, 18"); a(f"s_add_u32 s{sOST}, s{s}, s{s+1}")
    a(f"s_add_u32 s{s}, s{sTL}, 1"); a(f"s_cmp_lt_u32 s{sRB}, 2"); a(f"s_cselect_b32 s{sBU}, s{s}, 99")
    a(f"s_cmp_eq_u32 s{sRB}, 0"); a(f"s_cselect_b32 s{s}, 0, {MB}"); a(f"s_sub_u32 s{s}, s{sRG}, s{s}"); a(f"s_lshl_b32 s{s+1}, s{sJ}, 3"); a(f"s_add_u32 s{s+1}, s{s+1}, s{sWID}"); a(f"s_lshl_b32 s{s+1}, s{s+1}, 12")
    a(f"s_add_u32 s{s}, s{s}, s{s+1}"); a(f"s_add_u32 s{sSRC}, s{s}, {KVA}")
Q, SB, PB, KF, VF, OA, LS, MI = 24, 32, 64, 80, 88, 104, 120, 128
vA1, vA2, vV1 = MI, MI + 1, MI + 2
def att_setup(a):
    s = sT[2]
    a(f"v_add_u32 v{vA1}, s{sA1}, v{vL16}"); a(f"s_and_b32 s{s}, s{sA1}, 4096"); a(f"s_add_u32 s{s}, s{s}, {RB1}"); a(f"v_add_u32 v{vA2}, s{s}, v{vL16}")
    a(f"s_lshl_b32 s{s}, s{sWID}, 12"); a(f"s_add_u32 s{s}, s{s}, {RB1}"); a(f"v_add_u32 v{vV1}, s{s}, v{vL16}")
    for k in range(1, 4): a(f"v_add_u32 v{vWO[k]}, {k*(8*2048 - 1024)}, v{vWO[0]}")
def o_out(O, ls, r):
    return [f"v_rcp_f32 v{r}, v{ls}"] + [bmul(vr(O+2*p,2), vr(O+2*p,2), r) for p in range(4)] + \
           [f"v_add_u32 v{O}, 0x8000, v{O}"] + [f"v_cvt_pk_bf16_f32 v{O+p}, v{O+2*p}, v{O+2*p+1}" for p in range(4)] + [f"v_and_b32 v{O}, -2, v{O}"]
def zip2(x, y): return [z for p in zip(x, y) for z in p]

def attention_A_exact(a):
    s = sT[1]; CB, MX, D0 = SB + 16, MI + 4, MI + 6
    a.label("L_exact")
    a(f"s_lshl_b32 s{s+2}, s{sRB}, 2"); a(f"s_add_u32 s{s+2}, s{s+2}, s{sTL}")
    a(f"s_lshl_b32 s{s}, s{sJ}, 15"); a(f"s_and_b32 s{s+1}, s{sA1}, 4096"); a(f"s_add_u32 s{s}, s{s}, s{s+1}"); a(f"s_add_u32 s{s}, s{s}, {RGN + KVA}"); a(f"v_add_u32 v{MI}, s{s}, v{vL16}")
    d_qk(a, D0); a(f"v_mov_b32 v{MI+1}, {BIG}"); a(f"s_min_u32 s{s+4}, s{s+2}, 8")
    for k in range(2): a(f"v_mov_b32 v{MX+k}, {BIG}")
    for r in range(24): a(f"v_mov_b32 v{OA+r}, 0")
    for ps in range(2):
        a(f"s_mov_b32 s{s+3}, 0"); a.label(f"L_ex{ps}")
        a(f"s_sub_u32 s{s}, s{s+2}, s{s+3}"); a(f"s_lshr_b32 s{s+1}, s{s}, 2"); a(f"s_lshl_b32 s{s+1}, s{s+1}, 20"); a(f"s_and_b32 s{s}, s{s}, 3"); a(f"s_lshl_b32 s{s}, s{s}, 13"); a(f"s_add_u32 s{s}, s{s}, s{s+1}")
        for k in range(2 + 2 * ps): a(f"buffer_load_dwordx4 {vr(KF+4*k,4)}, v{MI}, {sr(sWS)}, s{s} offen offset:{k*1024} sc1")
        a(f"s_lshl_b32 s{s+1}, s{s+3}, 5"); a(f"v_add_u32 v{D0+1}, s{s+1}, v{D0}")
        for q in range(16):
            aa, kt, r = q >> 3, (q >> 2) & 1, q & 3
            a(f"v_add_u32 v{CB+q}, {(16*(aa-kt) - r) & 0xffffffff}, v{D0+1}"); a(f"v_cmp_gt_u32 vcc, 0x100, v{CB+q}"); a(f"v_cndmask_b32 v{CB+q}, v{MI+1}, 0, vcc")
        a("s_waitcnt vmcnt(0)")
        for q in range(4): a(M(SB + 4 * q, KF + 4 * (q & 1), Q + 4 * (q >> 1), CB + 4 * q))
        if ps == 0:
            for q in range(0, 16, 2): a(f"v_max3_f32 v{MX + (q>>3)}, v{MX + (q>>3)}, v{SB+q}, v{SB+q+1}")
        else:
            for q in range(16): a(f"v_sub_f32 v{SB+q}, v{SB+q}, v{MX + (q>>3)}")
            for q in range(16): a(f"v_exp_f32 v{SB+q}, v{SB+q}")
            for q in range(8): a(f"v_cvt_pk_bf16_f32 v{PB+q}, v{SB+2*q}, v{SB+2*q+1}")
            for aa in range(2):
                for d in range(2): a(M(OA + 8 * aa + 4 * d, VF + 4 * d, PB + 4 * aa, OA + 8 * aa + 4 * d))
                a(M(LS + 4 * aa, SEL, PB + 4 * aa, LS + 4 * aa))
        a(f"s_add_u32 s{s+3}, s{s+3}, 1"); a(f"s_cmp_le_u32 s{s+3}, s{s+4}"); a(f"s_cbranch_scc1 L_ex{ps}")
        if ps == 0:
            for k in range(2):
                for sw in ("16", "32"): a(f"v_mov_b32 v{MI+2}, v{MX+k}"); a(f"v_permlane{sw}_swap_b32 v{MX+k}, v{MI+2}"); a(f"v_max_f32 v{MX+k}, v{MX+k}, v{MI+2}")
    a("s_nop 7"); a("s_branch L_aok")

PVAT = (1, 3, 5, 7, 9, 11); SAT = (13, 15, 17, 19); DAT = (2, 8, 14, 20)
def attention_A(a):
    s = sT[1]; lq = LQ(a)
    Sx = lambda k: SB + 16 * (k & 1); Px = lambda k: PB + 8 * (k & 1); Vx = lambda k: VF + 8 * (k == 4)
    MDg, MO, BI = MK, MK + 4, MK + 8
    def rd(dst, k, o):
        v, b = (vA1, (4 - k) * 8192) if k <= 4 else (vA2, (k - 5) * 8192)
        return [f"ds_read_b128 {vr(dst+4*h,4)}, v{v} offset:{b + o + h*1024}" for h in range(2)]
    subs = lambda k: [(0, 0, MDg), (1, 0, "0"), (1, 1, MDg)] if k == 0 else [(0, 0, MO), (0, 1, BI), (1, 1, MO)] if k == 4 else [(x, y, BI) for x in range(2) for y in range(2)]
    smf = lambda k: [M(Sx(k) + 8 * x + 4 * y, KF + 4 * y, Q + 4 * x, c) for x, y, c in subs(k)]
    def pv(k):
        L = []
        for x in range(2):
            for d in range(2): L.append(M(OA + 8 * x + 4 * d, Vx(k) + 4 * d, Px(k) + 4 * x, OA + 8 * x + 4 * d if k else "0"))
            L.append(M(LS + 4 * x, SEL, Px(k) + 4 * x, LS + 4 * x if k else "0"))
        return L
    def bias(reg, val, to):
        def f():
            l0, l1 = a.newlabel("Lbi"), a.newlabel("Lbj")
            a(f"s_cmp_eq_u32 s{reg}, {val}"); a(f"s_cbranch_scc1 {l0}"); a.label(l1)
            a.tail += [l0 + ":"] + [f"v_mov_b32 v{BI+r}, {to}" for r in range(4)] + [f"s_branch {l1}"]
        return f
    get = [f"s_lshl_b32 m0, s{sWID}, 12", f"s_add_u32 m0, m0, {RB1}"] + [f"buffer_load_dwordx4 v{vL16}, {sr(sWS)}, s{sSRC} offen offset:{k*1024} sc1 lds" for k in range(4)]
    dma = {0: [get[:3], [get[3]], [get[4]], [get[5]]], 1: wo_whole(0), 2: wo_whole(8)}
    for m, p in enumerate((16, 24)):
        w = wo_whole(p); dma[4 + 2 * m] = [w[0], [], w[1], []]; dma[5 + 2 * m] = [w[2], [], w[3], []]
    a.label("L_attA")
    a("s_waitcnt lgkmcnt(0)"); a("s_barrier")
    a.stamp("c", "Y")
    l = a.sif(sWID, "ge", 4)
    for h in range(2): a(f"ds_read_b128 {vr(Q+4*h,4)}, v{vV1} offset:{h*1024}")
    a.label(l)
    a.all(rd(KF, 0, 0)); a(f"v_mov_b32 v{PB+2}, 0"); a(f"v_mov_b32 v{PB+3}, 0"); a("s_waitcnt lgkmcnt(0)"); a.all(smf(0))
    for k in range(9):
        valu = []; pend = []
        for x, y, c in subs(k):
            for h in range(2):
                r = Sx(k) + 8 * x + 4 * y + 2 * h
                valu += [f"v_exp_f32 v{r}, v{r}", f"v_exp_f32 v{r+1}, v{r+1}"] + pend; pend = [f"v_cvt_pk_bf16_f32 v{Px(k) + 4*x + 2*y + h}, v{r}, v{r+1}"]
        if k == 4: valu += [f"v_mov_b32 v{Px(4)+4}, 0", f"v_mov_b32 v{Px(4)+5}, 0"]
        valu += pend
        sc = lambda n: n * len(valu) // 24
        ins = {}
        add = lambda n, L: ins.setdefault(sc(n), []).extend(L)
        if k == 4:
            lq.drain(f" vmcnt({6 if WARM == 1 and WARMAT == 3 else 4})")
            if WARM == 1 and WARMAT == 3: l = a.sif(sL, "lg", 0); a("s_waitcnt vmcnt(4)"); a.label(l)
            a("s_barrier")
            a.stamp("c", "Z")
        if k < 8: add(0, rd(KF, k + 1, 0))
        if k == 0: add(0, dma[0][0] + dma[0][1])
        if k:
            for n, x in zip(PVAT, pv(k - 1)): add(n, [x])
        if k != 4: add(12, rd(Vx(k), k, 2048) + (rd(Vx(4), 4, 2048) if k == 3 else []))
        if k < 4: add(12, [bias(sBU, k + 1, BIG)])
        if k == 4: add(12, [bias(sRB, 1, 0)])
        if k < 8:
            for n, x in zip(SAT, smf(k + 1)): add(n, [x])
        if k == WARMAT and WARM == 1:
            def wm(): l = a.sif(sL, "eq", 0); warm(a, MI + 4); a.label(l)
            add(4, [wm])
        for n, d in zip(DAT, (dma[0][2:] if k == 0 else dma.get(k, []))): add(n, d)
        L = []
        for n, x in enumerate(valu): L += ins.get(n, []) + [x]
        emit(lq, L)
    emit(lq, pv(8))
    a.stamp("c", "att")
    m = MI + 4
    a(f"v_mov_b32 v{m}, 0"); a(f"v_mov_b32 v{m+1}, 0")
    for p in range(8): a(f"v_maximum3_f32 v{m + (p&1)}, |v{OA+2*p}|, |v{OA+2*p+1}|, v{m + (p&1)}")
    a(f"v_min_f32 v{m+2}, v{LS}, v{LS+4}"); a(f"v_maximum3_f32 v{m}, v{m}, v{m+1}, 0"); a(f"v_cmp_nle_f32 vcc, 0x21800000, v{m+2}"); a(f"v_mul_f32 v{m}, 0x21800000, v{m}")
    a(f"s_mov_b64 {sr(s+1,2)}, vcc"); a(f"v_maximum3_f32 v{m}, v{m}, v{LS}, v{LS+4}"); a(f"v_cmp_nge_f32 vcc, 0x5d800000, v{m}"); a(f"s_or_b64 vcc, vcc, {sr(s+1,2)}")
    if FORCE_EXACT: a("s_mov_b64 vcc, -1")
    a("s_cbranch_vccnz L_exact")
    a.label("L_aok")
    a.all(zip2(o_out(OA, LS, m), o_out(OA + 8, LS + 4, m + 2)))
    a.stores([f"buffer_store_dwordx4 {vr(OA+8*x,4)}, v{vL16}, {sr(sXS)}, s{sOST} offen offset:{x*1024}" for x in range(2)])
    a.stamp("c", "o")
    a(f"s_cmp_ge_u32 s{sWID}, 4"); a("s_cbranch_scc1 L_lnext")

def attention_B(a, lq, mode):
    s = sT[1]; vH, vG = vWO[1], vWO[2]
    VP, KH, S2, P2, O2, L2, R2 = [160, 170], 180, 184, 48, [76, 92], 108, [84, 100]
    BD, BP, AM, BP0 = MK, MK + 4, MK + 8, MK + 12
    Kf = lambda i: acc(2, i) if i >= 0 else KH
    order = [(j, 3) for j in KVS] + [(j, i if k % 2 else 2 - i) for k, j in enumerate((5, 4, 3, 2)) for i in range(3)] + serp((0, 1))
    tr = [t_c(2), t_c(3), t_ab(3), t_cv(0), t_cv(1)] + t_v(3) + [mode, t_ab(2), t_ab(1)] + t_v(2) + t_v(1) + [t_c(0), t_c(1), t_ab(0)] + t_v(0)
    HV = acc(4, 3)
    def out(r, f): return [clean(r), f"buffer_store_dwordx4 {vr(r,4)}, v{vG}, {sr(sWS)}, 0 offen offset:{f*1024} sc1", f"ds_write_b128 v{vH}, {vr(r,4)} offset:{4096 + f*1024}"]
    ev = lambda i: e_v(0, i, VP[0] + 2 * i + 2) + e_v(1, i, VP[1] + 2 * i + 2)
    qs = lambda i: [f"v_mul_f32 v{AB+2*i+k}, {QSCALE}, v{AB+2*i+k}" for k in range(2)]
    mv = [f"v_mov_b32 v{VP[d]+8+k}, v{HV+2*d+k}" for d in range(2) for k in range(2)]
    c_step(lq, 1, order, tr, bar=0)
    a.stamp("c", "g1kv")
    emit(lq, get_mode(a) + skew(e_qk(2, 3) + [out(acc(2, 3), 0) + qs(3)] + e_v(0, 3, HV) + e_v(1, 3, HV + 2) + [out(HV, 1) + mv] + e_qk(2, 2) + [qs(2)] + e_qk(2, 1) + [qs(1)] +
                                e_qk(0, 3) + e_qk(0, 2) + ev(2) + ev(1)))
    a.stamp("c", "epi")
    def pair(t0, t1):
        T = (t0, t1); L = []
        for u, i in enumerate(T): L += [M(S2 + 8 * u, Kf(i), acc(0, i), BD), M(S2 + 8 * u + 4, Kf(i - 1), acc(0, i), BP if i else BP0)]
        two = lambda f: zip2(f(0), f(1))
        def mx(u):
            b, r = S2 + 8 * u, R2[u]
            return [f"v_max3_f32 v{r}, v{b}, v{b+1}, v{b+4}", f"v_max3_f32 v{r+1}, v{b+2}, v{b+3}, v{b+6}", f"v_max_f32 v{r}, v{r}, v{b+5}", f"v_max_f32 v{r+1}, v{r+1}, v{b+7}", f"v_max_f32 v{r+2}, v{r}, v{r+1}"]
        L += two(mx)
        x, y = R2[0] + 2, R2[1] + 2
        L += [f"v_permlane16_swap_b32 v{x}, v{y}", f"v_max_f32 v{x}, v{x}, v{y}", f"v_mov_b32 v{y}, v{x}", f"v_permlane32_swap_b32 v{x}, v{y}", f"v_max_f32 v{x}, v{x}, v{y}", f"v_mov_b32 v{y}, v{x}",
              f"v_permlane16_swap_b32 v{x}, v{y}"]
        def ex(u):
            r, p = R2[u], P2 + 4 * u
            return [f"v_sub_f32 v{r}, v{r}, v{r+2}", f"v_sub_f32 v{r+1}, v{r+1}, v{r+2}", f"v_exp_f32 v{r}, v{r}", f"v_exp_f32 v{r+1}, v{r+1}", f"v_cvt_pk_bf16_f32 v{r}, v{r}, v{r}", f"v_cvt_pk_bf16_f32 v{r+1}, v{r+1}, v{r+1}"] + \
                   [f"v_and_b32 v{p+k}, v{r + (k&1)}, v{AM+k}" for k in range(4)]
        L += two(ex)
        for u, i in enumerate(T): L += [M(L2 + 4 * u, SEL, P2 + 4 * u, "0")] + [M(O2[u] + 4 * d, VP[d] + 2 * i, P2 + 4 * u, "0") for d in range(2)]
        L += two(lambda u: o_out(O2[u], L2 + 4 * u, R2[u]))
        return L
    st = lambda t0, t1, so: [f"buffer_store_dwordx4 {vr(O2[u],4)}, v{vL16}, {sr(sXS)}, s{so} offen offset:{(i&1)*1024}" for u, i in enumerate((t0, t1))]
    lq.drain()
    a(f"s_add_u32 s{s}, s{sOST}, 65536")
    L, rest = weave(pair(3, 2), skew(e_qk(2, 0) + [qs(0)] + ev(0) + e_qk(0, 1) + e_qk(0, 0)))
    a.all(L); a.all(rest)
    a.stamp("c", "qend")
    a("s_barrier")
    a.stamp("c", "Y")
    a(f"ds_read_b128 {vr(KH,4)}, v{vH}")
    for d in range(2): a(f"ds_read_b64 {vr(VP[d],2)}, v{vH} offset:{1024 + 8*d}")
    t = Asm(); g2_setup(t); L = pair(1, 0)
    a.all(L[:3]); a.stores(st(3, 2, s)); a("s_waitcnt lgkmcnt(0)")
    L, rest = weave(L[:3] + ["s_nop 0"] + L[3:], [x.strip() for x in t.lines])
    a.all(L[4:]); a.stores(st(1, 0, sOST)); a.all(rest)
    a.stamp("c", "o")
    a("s_branch L_g2")

A0, OB, WF2, GA, vO, vXL, GT = 24, 56, 120, 232, 248, 249, 250
def g2_setup(a):
    s = sT[2]
    for c in range(4): a(f"v_xor_b32 v{GA+c}, {32*c}, v{vTR}")
    for w in (1, 2):
        for c in range(4): a(f"v_add_u32 v{GA+4*w+c}, {w*64*KB}, v{GA+c}")
    a(f"v_add_u32 v{vO}, s{sOLD}, v{vL16}"); a(f"s_lshl_b32 s{s}, s{sWID}, 12"); a(f"s_add_u32 s{s}, s{s}, {XB[0]}"); a(f"v_add_u32 v{vXL}, s{s}, v{vL16}")
    a(f"s_lshl_b32 s{sOF}, s{sJ}, 12")
    for k in range(1, 4): a(f"s_xor_b32 s{sOF+k}, s{sOF}, {ror4(k) << 12}")
def o_ld(i): return [f"buffer_load_dwordx4 {vr(OB + 8*(i%8) + 4*rt,4)}, v{vO}, {sr(sXS)}, s{sOF + (i>>1)%4} offen offset:{(i&1)*2048 + rt*1024} sc1" for rt in range(2)]
def ofix_sub(a):
    a.label("L_ofix")
    a("s_waitcnt vmcnt(0)")
    for b in range(8):
        l = a.newlabel("Lfx"); a.all(a.marker([OB + 8 * b, OB + 8 * b + 4], GT, "o")); a(f"s_cbranch_vccz {l}"); a.all(o_ld(b)); a.label(l)
    a("s_waitcnt vmcnt(0)")
    a(f"s_add_u32 s{sCNT}, s{sCNT}, 1"); a(f"s_cmp_lt_u32 s{sCNT}, {SPIN}")
    a(f"s_setpc_b64 {sr(sRA,2)}")
def gemm2(a):
    s = sT[1]; lq = LQ(a); D = G2D
    ac = lambda rt, c: A0 + (rt * 4 + c) * 4
    def rd(i):
        o = wopos(i); return [f"ds_read_b64_tr_b16 {vr(WF2 + 16*(i%3) + 4*c + 2*hf,2)}, v{GA + 4*(o >> 16) + c} offset:{(o & 0xffff) + hf*2048}" for c in range(4) for hf in range(2)]
    def check(i):
        lc, lt, ok = a.newlabel("Loc"), a.newlabel("Lot"), a.newlabel("Look")
        t = a.marker([OB + 8 * (i % 8), OB + 8 * (i % 8) + 4], GT, "o")
        a.tail += [lt + ":", f"s_call_b64 {sr(sRA,2)}, L_ofix", f"s_cbranch_scc0 {ok}"] + t + [f"s_cbranch_vccnz {lt}", f"s_branch {ok}"]
        return [[t[0]], [t[1]], [f"s_cbranch_vccnz {lt}", ok + ":"]]
    g2_setup(a)
    a.label("L_g2")
    for i in range(D): a.all(o_ld(i))
    for i in range(2): a.all(rd(i))
    for b in range(2 * D, 16): a(f"v_mov_b32 v{OB+4*b}, 0")
    for p in range(16): a(f"v_lshlrev_b32 v{A0+2*p}, 16, v{XRES+p}"); a(f"v_and_b32 v{A0+2*p+1}, 0xffff0000, v{XRES+p}")
    a(f"s_add_u32 s{sL}, s{sL}, 1"); a(f"s_mov_b32 s{sCNT}, 0"); c_setup(a, False); set_wo(a)
    l0, l1 = a.newlabel("Lmb"), a.newlabel("Lmc")
    a(f"s_cbranch_scc1 {l0}"); masks_A(a); a(f"s_branch {l1}"); a.label(l0); masks_B(a); a.label(l1)
    a(f"s_waitcnt vmcnt({2*(D-1)})"); a.all(sum(check(0), []))
    a.stamp("c", "R", 1)
    for i in range(32):
        R = rd(i + 2) if i + 2 < 32 else [None] * 8
        ex = {m: [] for m in range(8)}
        n = i + D
        if n < 32:
            if n >= 8 and n % 2 == 0: k = sOF + (n >> 1) % 4; ex[0] += [f"s_xor_b32 s{k}, s{k}, {(ror4(n >> 1) ^ ror4((n >> 1) - 4)) << 12}"]
            ex[1].append(o_ld(n)[0]); ex[3].append(o_ld(n)[1])
        if i < 31:
            c = check(i + 1); ex[4] += [f"s_waitcnt vmcnt({2*(min(32, n + 1) - i - 2)})"] + c[0]; ex[5] += c[1]; ex[6] += c[2]
        if i == 5: ex[7].append("s_barrier")
        if i == S3AT: ex[2].append("s_barrier")
        a(f"s_waitcnt lgkmcnt({8 if i < 31 else 0})")
        order = [(c, rt ^ (c & 1)) for c in range(4) for rt in range(2)] if i < 31 else [(c, rt) for rt in range(2) for c in range(4)]
        for m, (c, rt) in enumerate(order):
            a(M(ac(rt, c), WF2 + 16 * (i % 3) + 4 * c, OB + 8 * (i % 8) + 4 * rt, ac(rt, c)))
            if R[m]: a(R[m])
            a.all(ex[m])
    assert 23 <= S3AT <= 31
    a.stamp("c", "g2end", 1)
    a(f"s_cmp_eq_u32 s{sL}, {NL}"); a("s_cbranch_scc1 L_final")
    L = []
    for f in range(4):
        L += [f"v_and_b32 v{A0+8*f}, 0xffff0000, v{A0+8*f}"] + [f"v_cvt_pk_bf16_f32 v{XRES+p}, v{A0+2*p}, v{A0+2*p+1}" for p in (4*f+1, 4*f, 4*f+2, 4*f+3)] + [f"v_or_b32 v{XRES+4*f}, 1, v{XRES+4*f}"]
        L += [f"buffer_store_dwordx4 {vr(XRES+4*f,4)}, v{vL16}, {sr(sXD)}, s{sXST} offen offset:{f*1024}", f"ds_write_b128 v{vXL}, {vr(XRES+4*f,4)} offset:{f*1024}"]
    a.stores(L)
    a("s_branch L_centry")

def gen(stamps=False):
    a = G(stamps)
    s = sT[1]
    a("s_cmp_ge_u32 s2, 256"); a("s_cbranch_scc1 L_end")
    a("s_load_dwordx16 s[48:63], s[0:1], 0"); a("s_load_dwordx2 s[64:65], s[0:1], 64")
    if stamps: a(f"s_memtime s[{sT0}:{sT0+1}]"); a("s_mov_b32 s70, 61"); a("s_mov_b32 s82, 0"); a("s_memrealtime s[80:81]")
    a("v_lshrrev_b32 v1, 6, v0"); a(f"v_readfirstlane_b32 s{sWID}, v1")
    a(f"v_and_b32 v{vLANE}, 63, v0"); a(f"v_lshlrev_b32 v{vL16}, 4, v{vLANE}")
    a(f"s_and_b32 s{s}, s2, 7"); a(f"s_lshl_b32 s{sRB}, s{s}, 1"); a(f"s_bfe_u32 s{s}, s2, 0x10003"); a(f"s_add_u32 s{sRB}, s{sRB}, s{s}"); a(f"s_lshr_b32 s{sJ}, s2, 4")
    a(f"s_mov_b32 s{sL}, 0")
    def common():
        srd(a, sWS, pWS, WS_SIZE); srd(a, sWO, pWOA, 2097152); set_bufs(a, sTS); srd(a, sWN, pWB, 6291456)
        a(f"s_mov_b32 s{sFAST}, 0"); a(f"v_mov_b32 v{vSTAMP}, 0"); a("v_mov_b32 v7, 0"); a(f"v_mov_b32 v{vST}, {OOB}")
        a(f"s_lshl_b32 s{sRG}, s{sRB}, 20"); a(f"s_add_u32 s{sRG}, s{sRG}, {RGN}"); a(f"s_lshl_b32 s{sWR}, s{sJ}, 17")
        a(f"s_lshl_b32 s{s}, s{sWID}, 2"); a(f"s_lshr_b32 s{s}, {sum((wohead(w) & 3 | wohead(w) >> 2) << (4*w) for w in range(8))}, s{s}"); a(f"s_and_b32 s{s+1}, s{s}, 4"); a(f"s_lshl_b32 s{s+1}, s{s+1}, 2")
        a(f"s_and_b32 s{s}, s{s}, 3"); a(f"s_or_b32 s{s}, s{s}, s{s+1}"); a(f"s_lshl_b32 s{s}, s{s}, 16"); a(f"s_xor_b32 s{sWRW}, s{sWR}, s{s}")
        a(f"v_bfe_u32 v28, v{vLANE}, 2, 3"); a(f"v_bfe_u32 v29, v{vLANE}, 1, 1"); a("v_and_b32 v30, 6, v28"); a("v_xor_b32 v29, v29, v30"); a("v_lshlrev_b32 v29, 4, v29"); a("v_lshlrev_b32 v28, 7, v28")
        a(f"v_and_b32 v30, 1, v{vLANE}"); a("v_lshlrev_b32 v30, 3, v30"); a("v_add3_u32 v28, v28, v29, v30"); a(f"v_lshrrev_b32 v29, 5, v{vLANE}"); a(f"v_lshl_add_u32 v{vTR}, v29, 10, v28")
        a(f"v_lshrrev_b32 v28, 3, v{vLANE}"); a("v_and_b32 v29, 6, v28"); a(f"v_and_b32 v30, 7, v{vLANE}"); a("v_xor_b32 v29, v29, v30"); a("v_lshlrev_b32 v29, 4, v29"); a("v_lshlrev_b32 v28, 11, v28")
        a(f"s_lshl_b32 s{s}, s{sJ}, 7"); a(f"v_add3_u32 v{vWO[0]}, v28, v29, s{s}")
        sel_rows(a, SEL, 3, 0); att_once(a)
    def nonce():
        a(f"v_readfirstlane_b32 s{sN0}, v26"); a(f"v_readfirstlane_b32 s{sN1}, v27")
        a(f"s_add_u32 s{sN0}, s{sN0}, 1"); a(f"s_add_u32 s{sN1}, s{sN1}, 16"); a(f"s_and_b32 s{sN1}, s{sN1}, 0xfffffff0")
        a(f"s_getreg_b32 s{s}, hwreg(HW_REG_XCC_ID, 0, 4)"); a(f"s_or_b32 s{sN1}, s{sN1}, s{s}")
    a(f"s_cmp_lt_u32 s{sWID}, 4"); a("s_cbranch_scc1 L_cstart")
    a(f"s_sub_u32 s{sW4}, s{sWID}, 4"); a(f"s_lshl_b32 s{sMX}, s{sW4}, 12"); a(f"s_lshl_b32 s{sMW}, s{sW4}, 11")
    ktables(a, True); a(f"s_mov_b32 s{sXSH}, 7")
    loader_setup_w(a, True); loader_setup_x(a, True); kstage(a, 0)
    a("s_waitcnt lgkmcnt(0)"); srd(a, sW, pWA, 6291456); srd(a, sXS, pX, 4194304)
    dma_w(a, 0); a.all(dma_x(0))
    srd(a, sWS, pWS, WS_SIZE); a(f"v_mov_b32 v28, {NONCE}"); a(f"buffer_load_dwordx2 v[26:27], v28, {sr(sWS)}, 0 offen sc1")
    hot_setup(a, True)
    for n in range(1, 4): a.all(hot(n))
    for n in (1, 2): kstage(a, n); a.all(dma_x(n)); dma_w(a, n)
    common(); ktables(a, False)
    a(f"s_lshl_b32 s{s}, s{sW4}, 14"); a(f"v_add_u32 v{vWP}, s{s}, v{vWO[0]}")
    loader_pre(a)
    for i in range(8): a(f"v_mov_b32 v{MRK+i}, {-1 if i < 4 else 0}")
    a(f"s_lshl_b32 s{s}, s{sRB}, 2"); a(f"s_add_u32 s{s}, s{s}, s{sW4}"); a(f"s_lshl_b32 s{s}, s{s}, 4"); a(f"s_add_u32 s{s}, s{s}, s{sJ}"); a(f"s_lshl_b32 s{sOB}, s{s}, 12")
    for n in range(4, HOTD + 5): a.all(hot(n))
    a("s_waitcnt vmcnt(20)")
    nonce()
    a("s_barrier")
    l = a.sif(sW4, "eq", 0); a.post(vXP, FT, True); a.label(l)
    a.label("L_lbody")
    if LPRIO: a(f"s_setprio {LPRIO}")
    loader(a)
    loader_next(a)
    colsum_sub(a)
    a.label("L_cstart")
    if CODEPF:
        l1 = a.sif(sWID, "eq", 3)
        a("s_getpc_b64 s[40:41]")
        a.label("L_pc")
        a(f"s_sub_u32 s40, s40, L_pc - {KNAME}"); a("s_subb_u32 s41, s41, 0")
        a(f"s_lshr_b32 s{s}, s2, 3"); a(f"s_mul_i32 s{s}, s{s}, {CODEPF * 128}"); a(f"v_lshlrev_b32 v28, 7, v{vLANE}"); a(f"v_add_u32 v28, s{s}, v28")
        a(f"s_mov_b32 s{s}, L_last - {KNAME}"); a(f"v_min_u32 v28, s{s}, v28")
        a("v_mov_b32 v29, s41"); a("v_add_co_u32 v28, vcc, s40, v28"); a("v_addc_co_u32 v29, vcc, 0, v29, vcc")
        a(f"s_mov_b64 exec, {(1 << CODEPF) - 1}"); a(f"global_load_dword v{vDUM}, v[28:29], off"); a("s_mov_b64 exec, -1")
        a.label(l1)
    io_addr(a, 24)
    a("s_waitcnt lgkmcnt(0)")
    srd(a, sXS, pX, 4194304)
    for f in range(4): a(f"buffer_load_dwordx4 {vr(XRES+4*f,4)}, v{24 + (f>>1)}, {sr(sXS)}, 0 offen offset:{(f&1)*64}")
    srd(a, sWS, pWS, WS_SIZE); a(f"v_mov_b32 v28, {NONCE}"); a(f"buffer_load_dwordx2 v[26:27], v28, {sr(sWS)}, 0 offen sc1")
    common(); srd(a, sW, pWA, 6291456); c_setup(a, True); c_once(a); masks_A(a)
    a(f"s_mov_b64 {sr(sXS,2)}, {sr(sXD,2)}"); a(f"s_mov_b64 {sr(sXD,2)}, {sr(sTS,2)}")
    a("s_waitcnt vmcnt(0)"); nonce()
    for f in range(4): a.all(row_swaps(f))
    a.stamp("c", "x0")
    a.all(stats_mfma()); stats_out(a); a(f"v_or_b32 v{vST}, {2*OOB}, v{vST}"); a("s_waitcnt vmcnt(0)"); a("s_branch L_cfirst")
    consumer(a)
    attention_A(a)
    gemm2(a)
    ofix_sub(a); attention_A_exact(a)
    a.label("L_final")
    io_addr(a, 160)
    for f in range(4):
        for p in range(4 * f, 4 * f + 4): a(f"v_cvt_pk_bf16_f32 v{XRES+p}, v{A0+2*p}, v{A0+2*p+1}")
        if f: a.all(row_swaps(f - 1))
    a.all(row_swaps(3))
    for f in range(4): a(f"buffer_store_dwordx4 {vr(XRES+4*f,4)}, v{160 + (f>>1)}, {sr(sXD)}, 0 offen offset:{(f&1)*64}")
    a.label("L_out")
    a.stamp("c", "end", 1)
    if stamps:
        a("s_waitcnt lgkmcnt(0)"); a(f"s_sub_u32 s68, s82, s{80 if RT else sT0}"); a("s_and_b32 m0, s70, 63"); a(f"v_writelane_b32 v{vSTAMP}, s68, m0")
        a("s_memrealtime s[82:83]"); a("s_waitcnt lgkmcnt(0)"); a(f"v_writelane_b32 v{vSTAMP}, s80, 62"); a(f"v_writelane_b32 v{vSTAMP}, s82, 63")
        a(f"s_lshl_b32 s{s}, s2, 11"); a(f"s_lshl_b32 s{s+1}, s{sWID}, 8"); a(f"s_add_u32 s{s}, s{s}, s{s+1}"); a(f"s_add_u32 s{s}, s{s}, {STAMP}")
        a(f"v_lshlrev_b32 v24, 2, v{vLANE}"); a(f"buffer_store_dword v{vSTAMP}, v24, {sr(sWS)}, s{s} offen")
        if TRACE: a(f"s_add_u32 s{s}, s{s}, {1 << 20}"); a(f"buffer_store_dword v7, v24, {sr(sWS)}, s{s} offen")
    a.label("L_end")
    a("s_endpgm")
    a.all(a.tail)
    a.label("L_last")
    a("s_endpgm")
    body, n = hazard.fix(a.text())
    hdr = open(HERE + "/header3.txt").read().rstrip("\n").split("\n")
    hdr.append("; @launch grid=(256,1,1) block=(512,1,1) lds=163840")
    return kernel_file(hdr, [(KNAME, body, 256, 102, 256)]), n

if __name__ == "__main__":
    for x in sys.argv[2:]:
        if "=" in x: k, v = x.split("=", 1); assert k in globals(), k; globals()[k] = eval(v)
    txt, n = gen("stamps" in sys.argv)
    open(sys.argv[1], "w").write(txt)
    print("lines", txt.count("\n"), "nops inserted", n)
```

```python
import sys, os, struct, math
HERE = os.path.dirname(os.path.abspath(__file__)); sys.path.insert(0, HERE + "/../tools")
from asmlib import *
import hazard

KB, MB = 1024, 1 << 20
ST, CSP, FL, RGN, XBUF, STAMP = 0, 256 * KB, 640 * KB, 2 * MB, 18 * MB, 70 * MB
XFL, RFL, NONCE, CFL, KFL, ST2 = FL, FL + 8 * KB, FL + 16 * KB, FL + 32 * KB, FL + 128 * KB, FL + 256 * KB
HALO, KVA = 0, 512 * KB
WS_SIZE = 72 * MB
XB = [32 * KB, 0, 16 * KB]; WQ = [80 * KB, 64 * KB, 72 * KB]; WKV = [48 * KB, 96 * KB, 112 * KB]
TAB, RB1, RB2, OWN, QX = 88 * KB, 96 * KB, 32 * KB, 128 * KB, 48 * KB
wseg = lambda n, seg: WQ[n % 3] if seg == 0 else WKV[n % 3] + (seg - 1) * 8192
wopos = lambda p: p * 4096 + (32 * KB if p >= 8 else 0)
BIG = 0xF149F2CA
QSCALE = struct.unpack("<I", struct.pack("<f", 32 ** -0.5 * math.log2(math.e)))[0]
WSTEP = 64 * 6144
SPIN = 1 << 18
OOB = 1 << 30
RT = 0; TRACE = 0; SKIP = []; FORCE_EXACT = 0; NL = 4; FORCE_SLOW = 0
HOT = 1; HOTD = 4; HOTE = 1; WOHN = 4; FRATE = 4; FR1 = 3; OPK = 0; LOOKAT = 4; W2N = 1; CODEPF = 13; BARM = 2; BARM0 = 8; G2D = 6; S3AT = 24; NREG = 0; WBL = 1; ROT0 = 2; XDEL = 0; PST = 0; HOT0 = 1; HOTF = 0; RSH = 1; CPOST = 7; WOHOT = 9
NORST = 0; RSTF = 0; RST = (3, 4, 5, 6, 7, 8, 9, 10); S1N = 4; S2N = 10; CLD = 10; WARM = 1; WARMAT = 2; LPRIO = 0; APRIO = 1; G2J = 'Sh'; KPOST = 6; WOV = 8; ZEND = 0; E8 = 2
WSP = (0, 0, 0, 0); WOB = ([0, 1, 2, 3, 8, 9, 16, 17, 18, 19], [4, 5, 6, 7, 10, 11, 20, 21, 22, 23], [12, 13] + list(range(24, 32)), [14, 15]); FT8 = 8
RS = 1

sW, sWO, sWS, sXD, sXS, sWN = 4, 8, 12, 16, 88, 92
sWID, sRB, sJ, sL, sFAST, sN0, sN1 = 3, 20, 21, 22, 23, 24, 25
sT = list(range(26, 40)); sTS = 40; sOF = 44
pX, pWA, pWOA, pWB, pWOB, pOUT, pDBG, pWS = 48, 50, 52, 56, 58, 60, 62, 64
sT0 = 66
sTL, sRA, sKT, sWRW, sXSH, sMX, sMW, sKN = 71, 72, 74, 76, 77, 78, 79, 100
sM1, sM2 = 84, 86
sXO, sWOF, sNS, sW4 = 84, 85, 86, 87
sKH, sHB, sOB = 44, 46, 47
sCNT, sRG, sWI, sWR = 96, 97, 98, 99
sA1, sSRC, sOST, sKVG, sKVL, sHG, sXST, sOLD = 54, 55, 62, 63, 48, 49, 0, 1
vL16, vLANE, vTR, vSTAMP = 0, 1, 2, 6
vWO = [3, 4, 5, 211]
XRES = 8
ACC, FR = 24, 120
AX, AW, vST, vAB, vVT, vCQ, vCV, SEL, MK = 200, 202, 206, 207, 208, 209, 210, 212, 216
LX, LW, vHOT, vWP, WPRE, CSK = 8, 12, 18, 20, 138, 232
vDUM = 255

def vr(r, n): return f"v[{r}:{r+n-1}]"
def sr(r, n=4): return f"s[{r}:{r+n-1}]"
def M(d, A, B, C): return f"v_mfma_f32_16x16x32_bf16 {vr(d,4)}, {vr(A,4)}, {vr(B,4)}, {C if isinstance(C,str) else vr(C,4)}"
NAMES = dict(c=["x0", "g1start", "g1kv", "epi", "qend", "Y", "Z", "att", "o", "R", "g2end", "end", "kf", "Z3"], l=["x1", "x2", "xf", "rf", "b16", "Y", "Z", "att", "o", "kv", "S3", "end", "B0", "Z3", "sp"])

class G(Asm):
    def __init__(self, stamps):
        super().__init__(); self.stamps = stamps; self.tail = []
    def all(self, L):
        for x in L: self(x)
    def stamp(self, role, name, back=0):
        if not self.stamps or SKIP == 'all' or name in SKIP: return
        self(f"s_sub_u32 s68, s82, s{80 if RT else sT0}")
        self("s_memrealtime s[82:83]" if RT else "s_memtime s[82:83]")
        self("s_mov_b32 s69, m0"); self("s_mov_b32 m0, s70"); self(f"s_lshl_b32 s70, s{sL}, 4"); self(f"v_writelane_b32 v{vSTAMP}, s68, m0"); self("s_mov_b32 m0, s69")
        self(f"s_add_i32 s70, s70, {NAMES[role].index(name) - 16 * back}")
    def sif(self, reg, cond, imm):
        l = self.newlabel("Lif")
        self(f"s_cmp_{cond}_u32 s{reg}, {imm}"); self(f"s_cbranch_scc0 {l}")
        return l
    def stores(self, L):
        l0, l1 = self.newlabel("Lwt"), self.newlabel("Lwt")
        self(f"s_cmp_eq_u32 s{sFAST}, 0"); self(f"s_cbranch_scc1 {l0}")
        self.all(L); self.label(l1)
        self.tail += [l0 + ":"] + [x + " sc1" if x.startswith("buffer_store") else x for x in L] + [f"s_branch {l1}"]
    def post(self, vaddr, vt, cross):
        self(f"v_mov_b32 v{vt}, s{sN0}"); self(f"v_mov_b32 v{vt+1}, s{sN1}")
        self("s_mov_b64 exec, 1")
        x = f"buffer_store_dwordx2 {vr(vt,2)}, v{vaddr}, {sr(sWS)}, 0 offen"
        if cross: self(x + " sc1")
        else: self.stores([x])
        self("s_mov_b64 exec, -1")
    def flagwait(self, vaddr, vt):
        lp, ok = self.newlabel("Lpoll"), self.newlabel("Lok")
        test = [f"v_xor_b32 v{vt+2}, s{sN0}, v{vt}", f"v_xor_b32 v{vt+3}, s{sN1}, v{vt+1}", f"v_lshrrev_b32 v{vt+3}, 4, v{vt+3}", f"v_or_b32 v{vt+2}, v{vt+2}, v{vt+3}", f"v_cmp_ne_u32 vcc, 0, v{vt+2}"]
        self.all(test); self(f"s_cbranch_vccnz {lp}"); self.label(ok)
        self.tail += [lp + ":", f"s_mov_b32 s{sT[0]}, 0", lp + "b:", f"buffer_load_dwordx2 {vr(vt,2)}, v{vaddr}, {sr(sWS)}, 0 offen sc1", "s_waitcnt vmcnt(0)"] + test + \
                     [f"s_cbranch_vccz {ok}", f"s_add_u32 s{sT[0]}, s{sT[0]}, 1", f"s_cmp_lt_u32 s{sT[0]}, {SPIN}", f"s_cbranch_scc1 {lp}b", f"s_branch {ok}"]
    def acquire(self):
        l = self.sif(sFAST, "eq", 0); self("buffer_inv sc1"); self("s_waitcnt vmcnt(0)"); self.label(l)
    def marker(self, regs, t, kind):
        if kind == "h": assert len(regs) == 1; return [f"v_cmp_eq_u32 vcc, -1, v{regs[0]}"]
        if kind == "o" and len(regs) == 4: return [f"v_or3_b32 v{t}, v{regs[0]}, v{regs[1]}, v{regs[2]}"] + self.marker([t, regs[3]], t, kind)
        if kind == "o": return [f"v_bitop3_b32 v{t}, v{regs[0]}, v{regs[1]}, 1 bitop3:0xa8", f"v_cmp_ne_u32 vcc, 0, v{t}"]
        if kind == "x": return [f"v_bitop3_b32 v{t}, v{regs[0]}, v{regs[1]}, v{regs[2]} bitop3:0x80", f"v_bitop3_b32 v{t}, v{t}, v{regs[3]}, 1 bitop3:0x80", f"v_cmp_eq_u32 vcc, 0, v{t}"]
        return [f"v_xor_b32 v{t}, s{sN0}, v{regs[0]}", f"v_xor_b32 v{t+1}, s{sN1}, v{regs[0]+1}", f"v_lshrrev_b32 v{t+1}, 4, v{t+1}", f"v_or_b32 v{t}, v{t}, v{t+1}", f"v_cmp_ne_u32 vcc, 0, v{t}"]
    def retry(self, regs, t, kind, again):
        lp, ok = self.newlabel("Lrt"), self.newlabel("Lok")
        test = self.marker(regs, t, kind)
        self.all(test); self(f"s_cbranch_vccnz {lp}"); self.label(ok)
        self.tail += [lp + ":", f"s_mov_b32 s{sT[0]}, 0", lp + "b:"] + list(again) + test + \
                     [f"s_cbranch_vccz {ok}", f"s_add_u32 s{sT[0]}, s{sT[0]}, 1", f"s_cmp_lt_u32 s{sT[0]}, {SPIN}", f"s_cbranch_scc1 {lp}b", f"s_branch {ok}"]
def bmul(d, vec, r):
    if r & 1: return f"v_pk_mul_f32 {d}, {vr(r-1,2)}, {vec} op_sel:[1,0] op_sel_hi:[1,1]"
    return f"v_pk_mul_f32 {d}, {vec}, {vr(r,2)} op_sel_hi:[1,0]"
def clean(r): return f"v_min_u32 v{r}, -2, v{r}"

def weave(main, fill):
    out = []; fill = list(fill)
    def short(x):
        c = hazard.I(x); d = 0
        for p in reversed(out[-12:]):
            p = hazard.I(p)
            if not p.op: continue
            if hazard.need(p, c) > d: return True
            if p.valu and c.valu and d == 0 and p.d & c.u: return True
            d += p.states()
        return False
    for x in main:
        while fill and short(x): out.append(fill.pop(0))
        out.append(x)
    return out, fill

class VM:
    def __init__(self, a): self.a = a; self.q = []; self.L = (0, 1, 2, 3)
    def add(self, tag, n=1, L=(0, 1, 2, 3)): self.q += [(tag, L)] * n
    def has(self, tag): return any(t == tag for t, L in self.q)
    def wait(self, tag, extra=""):
        a = self.a
        if not self.has(tag):
            if extra: a("s_waitcnt" + extra)
            return
        last = max(i for i, (t, L) in enumerate(self.q) if t == tag)
        self.q = self.q[last + 1:]
        n = {l: len([1 for t, L in self.q if t != "opt" and l in L]) for l in self.L}
        vals = sorted(set(n.values()), reverse=True); assert vals[0] <= 63
        done = a.newlabel("Lvm")
        for k, v in enumerate(vals):
            a(f"s_waitcnt vmcnt({v}){extra if k == 0 else ''}")
            if k + 1 < len(vals): a(f"s_bitcmp1_b32 {sum(1 << l for l in n if n[l] == v)}, s{sL}"); a(f"s_cbranch_scc1 {done}")
        if len(vals) > 1: a.label(done)

def sel_rows(a, d, mask, val):
    a(f"v_and_b32 v{d}, {mask}, v{vLANE}"); a(f"v_cmp_eq_u32 vcc, {val}, v{d}"); a(f"v_mov_b32 v{d+1}, 0x3f803f80"); a(f"v_cndmask_b32 v{d}, 0, v{d+1}, vcc")
    for i in range(1, 4): a(f"v_mov_b32 v{d+i}, v{d}")
def io_addr(a, v):
    s = sT[1]
    a(f"s_lshl_b32 s{s}, s{sRB}, 2"); a(f"s_add_u32 s{s}, s{s}, s{sWID}"); a(f"s_lshl_b32 s{s}, s{s}, 16"); a(f"s_lshl_b32 s{s+1}, s{sJ}, 7"); a(f"s_add_u32 s{s}, s{s}, s{s+1}")
    a(f"v_and_b32 v{v}, 15, v{vLANE}"); a(f"v_lshlrev_b32 v{v}, 11, v{v}"); a(f"v_bfe_u32 v{v+1}, v{vLANE}, 4, 1"); a(f"v_lshl_add_u32 v{v}, v{v+1}, 5, v{v}")
    a(f"v_lshrrev_b32 v{v+1}, 5, v{vLANE}"); a(f"v_lshlrev_b32 v{v+1}, 4, v{v+1}"); a(f"v_add3_u32 v{v}, v{v}, v{v+1}, s{s}"); a(f"v_add_u32 v{v+1}, 32768, v{v}")
def row_swaps(f): return [f"v_permlane16_swap_b32 v{XRES+4*f}, v{XRES+4*f+2}", f"v_permlane16_swap_b32 v{XRES+4*f+1}, v{XRES+4*f+3}"]
def set_bufs(a, cur):
    for d, ws in ((cur, NL & 1), (sXD, 1 - (NL & 1))):
        srd(a, d, pWS if ws else pOUT, 4194304, XBUF if ws else 0)
def swap_bufs(): return [f"s_xor_b64 {sr(sXS,2)}, {sr(sXS,2)}, {sr(sXD,2)}", f"s_xor_b64 {sr(sXD,2)}, {sr(sXS,2)}, {sr(sXD,2)}", f"s_xor_b64 {sr(sXS,2)}, {sr(sXS,2)}, {sr(sXD,2)}"]
def set_wo(a):
    a(f"s_bitcmp1_b32 s{sL}, 0"); a(f"s_cselect_b32 s{sWO}, s{pWOB}, s{pWOA}"); a(f"s_cselect_b32 s{sWO+1}, s{pWOB+1}, s{pWOA+1}")

def loader_setup_w(a, first):
    s = sT[1]; t = LW + 2
    a(f"v_lshrrev_b32 v{t}, 3, v{vLANE}"); a(f"v_and_b32 v{t+1}, 6, v{t}"); a(f"v_and_b32 v{t+2}, 7, v{vLANE}"); a(f"v_xor_b32 v{t+1}, v{t+1}, v{t+2}")
    if first:
        a(f"v_and_b32 v{t+2}, 4, v{t}"); a(f"v_add_u32 v{t}, v{t}, v{t+2}")
        a(f"s_lshr_b32 s{s}, s{sW4}, 1"); a(f"s_lshl_b32 s{s}, s{s}, 5"); a(f"s_and_b32 s{s+1}, s{sW4}, 1"); a(f"s_lshl_b32 s{s+1}, s{s+1}, 2"); a(f"s_add_u32 s{s}, s{s}, s{s+1}")
    else: a(f"s_lshl_b32 s{s}, s{sW4}, 4")
    a(f"s_mul_i32 s{s}, s{s}, 6144"); a(f"s_lshl_b32 s{s+1}, s{sJ}, 7"); a(f"s_add_u32 s{s}, s{s}, s{s+1}")
    a(f"v_mul_u32_u24 v{t}, 6144, v{t}"); a(f"v_lshlrev_b32 v{t+1}, 4, v{t+1}"); a(f"v_add3_u32 v{LW}, v{t}, v{t+1}, s{s}")
    for k in range(1, 6): a(f"v_add_u32 v{LW+k}, {(k&1)*((16 if first else 8)*6144 - 1024) + (k>>1)*2048}, v{LW}")
def loader_setup_x(a, first):
    s = sT[1]
    a(f"s_lshl_b32 s{s}, s{sRB}, 2"); a(f"s_add_u32 s{s}, s{s}, s{sW4}"); a(f"s_lshl_b32 s{s}, s{s}, 16")
    if first:
        a(f"v_lshrrev_b32 v{LX+1}, 4, v{vLANE}"); a(f"v_and_b32 v{LX+2}, 7, v{vLANE}"); a(f"v_xor_b32 v{LX+1}, v{LX+1}, v{LX+2}"); a(f"v_lshlrev_b32 v{LX+1}, 4, v{LX+1}")
        a(f"v_lshrrev_b32 v{LX+2}, 3, v{vLANE}"); a(f"v_lshlrev_b32 v{LX+2}, 11, v{LX+2}"); a(f"v_add3_u32 v{LX}, v{LX+1}, v{LX+2}, s{s}")
        a(f"v_xor_b32 v{LX+1}, 64, v{LX}"); a(f"v_add_u32 v{LX+2}, {2*15360}, v{LX}"); a(f"v_add_u32 v{LX+3}, {3*15360}, v{LX+1}"); a(f"v_add_u32 v{LX+1}, 15360, v{LX+1}")
    else:
        for k in range(4): a(f"v_add_u32 v{LX+k}, s{s}, v{vL16}")
ror4 = lambda t: (t >> 1) | ((t & 1) << 3)
def ktables(a, first, RS=1):
    s = sT[1]; t = sT[2]
    a(f"s_lshr_b32 s{s}, s{sRB}, {RS}"); a(f"s_lshl_b32 s{s}, s{s}, {RS + 2}")
    C = sum(ror4(k) << (4 * k) for k in range(16)) if first else sum(ror4(k) << (4 * k - 4) for k in range(1, 16)); d = sKT if first else sKN
    a(f"s_mov_b32 s{t}, {C & 0xffffffff}"); a(f"s_mov_b32 s{t+1}, {C >> 32}"); a(f"s_lshr_b64 {sr(d,2)}, {sr(t,2)}, s{s}"); a(f"s_sub_u32 s{s}, {64 if first else 60}, s{s}")
    a(f"s_lshl_b64 {sr(t,2)}, {sr(t,2)}, s{s}"); a(f"s_or_b64 {sr(d,2)}, {sr(d,2)}, {sr(t,2)}")
    if not first: a(f"s_lshl_b64 {sr(d,2)}, {sr(d,2)}, 4")
    if first and ROT0 == 3: a(f"s_bitcmp1_b32 s{sRB}, 0"); a(f"s_cselect_b32 s{s}, 0x88, 0"); a(f"s_xor_b32 s{d}, s{d}, s{s}")
    if not first or ROT0: a(f"s_mul_i32 s{s}, s{sJ}, 0x11111111"); a(f"s_xor_b32 s{d}, s{d}, s{s}"); a(f"s_xor_b32 s{d+1}, s{d+1}, s{s}")
def kidx(a, n, d, nxt=False): a(f"s_bfe_u32 s{d}, s{(sKN if nxt else sKT) + (n >> 3)}, {0x40000 + 4 * (n & 7)}")
def kstage(a, n, x=True, w=True):
    kidx(a, n, sT[1])
    if x: a(f"s_lshl_b32 s{sXO}, s{sT[1]}, s{sXSH}")
    if w: a(f"s_mul_i32 s{sWOF}, s{sT[1]}, {WSTEP}")
def dma_w(a, n, fill=(), segs=(0, 1, 2)):
    fill = list(fill); k = -(-len(fill) // 3)
    for seg in segs:
        a(f"s_add_u32 m0, s{sMW}, {wseg(n, seg)}"); a.all(fill[seg * k:(seg + 1) * k])
        for i in range(2): a(f"buffer_load_dwordx4 v{LW+2*seg+i}, {sr(sW)}, s{sWOF} offen offset:{i*1024} lds")
def dma_x(n, so=sXO): return [f"s_add_u32 m0, s{sMX}, {XB[n % 3]}"] + [f"buffer_load_dwordx4 v{LX+k}, {sr(sXS)}, s{so} offen offset:{k*1024} sc1 lds" for k in range(4)]
def touch(srd_, so, offs): return [f"s_buffer_load_dwordx2 {sr(sT[12],2)}, {sr(srd_)}, s{so} offset:{o + 60}" for o in offs]
def pre_w(m, so): return f"buffer_load_dwordx4 {vr(WPRE+4*m,4)}, v{LW+m%6}, {sr(sWN)}, s{so} offen offset:{(m&1)*1024}"
def hot_col(a, d, base):
    a(f"s_lshr_b32 s{d}, s{base}, 7"); a(f"s_sub_u32 s{d}, 3, s{d}"); a(f"s_and_b32 s{d}, s{d}, 7"); a(f"s_and_b32 s{d+1}, s{sJ}, 8"); a(f"s_add_u32 s{d}, s{d}, s{d+1}")
    a(f"s_bfe_u32 s{d+1}, s2, 0x40003"); a(f"s_lshl_b32 s{d+1}, s{d+1}, 2"); a(f"s_add_u32 s{d+1}, s{d+1}, s{sW4}")
def hot_setup(a, first):
    s = sT[1]; hot_col(a, s, sW)
    a(f"s_mul_i32 s{s+1}, s{s+1}, 6144"); a(f"s_lshl_b32 s{sHB}, s{s}, 7"); a(f"s_add_u32 s{sHB}, s{sHB}, s{s+1}")
    if first and not ROT0: a(f"s_mov_b64 {sr(sKH,2)}, {sr(sKT,2)}")
    else: a(f"s_xor_b32 s{s}, s{s}, s{sJ}"); a(f"s_mul_i32 s{s}, s{s}, 0x11111111"); a(f"s_xor_b32 s{sKH}, s{sKT}, s{s}"); a(f"s_xor_b32 s{sKH+1}, s{sKT+1}, s{s}")
def hot(n):
    s = sT[11]
    return [f"s_bfe_u32 s{s}, s{sKH + (n >> 3)}, {0x40000 + 4 * (n & 7)}", f"s_mul_i32 s{s}, s{s}, {WSTEP}", f"s_add_u32 s{s}, s{s}, s{sHB}"] + touch(sW, s, (0, 2048, 4096)) if HOT and n <= 15 else []
def warm(a, t):
    s = sT[1]
    a(f"s_lshl_b32 s{s}, s2, 3"); a(f"s_add_u32 s{s}, s{s}, s{sWID}"); a(f"v_lshlrev_b32 v{t}, 7, v{vLANE}")
    srd(a, sTS, pWOB, 2097152); a(f"s_lshl_b32 s{s+1}, s{s}, 10"); a(f"s_mul_i32 s{s}, s{s}, 3072")
    a("s_mov_b64 exec, 0xffffff"); a(f"buffer_load_dword v{vDUM}, v{t}, {sr(sWN)}, s{s} offen")
    a("s_mov_b64 exec, 0xff"); a(f"buffer_load_dword v{vDUM}, v{t}, {sr(sTS)}, s{s+1} offen"); a("s_mov_b64 exec, -1")
wohead = lambda p: 2 * ror4(p >> 1) + (p & 1)
def wo_piece(a, steps):
    s = sT[10]
    for p in steps:
        a(f"s_lshl_b32 m0, s{sW4}, 10"); a(f"s_add_u32 m0, m0, {wopos(p)}"); a(f"s_xor_b32 s{s}, s{sWR}, {wohead(p) << 16}")
        a(f"buffer_load_dwordx4 v{vWP}, {sr(sWO)}, s{s} offen lds")
def wo_whole(a, p0):
    s = sT[10]
    for k in range(2):
        a(f"s_lshl_b32 m0, s{sWI}, 13"); a(f"s_add_u32 m0, m0, {wopos(p0 + k)}"); a(f"s_xor_b32 s{s}, s{sWRW}, {wohead(p0 + k) << 16}")
        for q in range(4): a(f"buffer_load_dwordx4 v{vWO[q]}, {sr(sWO)}, s{s} offen offset:{q*1024} lds")

XR, S_, G_, HR, HS, HD, TA, TMP, MRK, FT = 24, 72, 88, 40, 88, 100, 188, 120, 124, 240
vXF, vS2, vXP, vSA, vTA, vGA, vCW, vXW, vHA, vCP, vCF, vCQ_, vSP = TA, TA + 1, TA + 2, TA + 3, TA + 4, TA + 5, TA + 6, TA + 7, TA + 8, TA + 11, TA + 12, TA + 13, TA + 14
def loader_pre(a):
    s = sT[1]; t = S_
    a(f"v_and_b32 v{t}, 15, v{vLANE}"); a(f"v_lshrrev_b32 v{t+1}, 4, v{vLANE}")
    a(f"s_lshl_b32 s{s}, s{sL}, 4"); a(f"s_add_u32 s{s}, s{s}, s{sRB}"); a(f"s_lshl_b32 s{s+1}, s{s}, 7"); a(f"s_add_u32 s{s+1}, s{s+1}, {XFL}"); a(f"v_lshl_add_u32 v{vXF}, v{t}, 3, s{s+1}")
    a(f"s_lshl_b32 s{s+2}, s{sJ}, 3"); a(f"s_add_u32 s{s+1}, s{s+1}, s{s+2}"); a(f"v_mov_b32 v{vXP}, s{s+1}")
    a(f"s_lshl_b32 s{s}, s{s}, 11"); a(f"s_add_u32 s{s}, s{s}, {ST2}"); a(f"s_lshl_b32 s{s+1}, s{sW4}, 5"); a(f"v_and_b32 v{t+2}, 31, v{vLANE}"); a(f"v_add_u32 v{t+2}, s{s+1}, v{t+2}")
    a(f"v_lshl_add_u32 v{vS2}, v{t+2}, 4, s{s}")
    a(f"v_lshrrev_b32 v{t+2}, 1, v{vLANE}"); a(f"v_add_u32 v{t+2}, s{s+1}, v{t+2}"); a(f"v_lshl_add_u32 v{t+2}, v{t+2}, 4, s{s}"); a(f"v_and_b32 v{t+3}, 1, v{vLANE}"); a(f"v_lshl_add_u32 v{vTA}, v{t+3}, 2, v{t+2}")
    a(f"s_lshl_b32 s{s+1}, s{sJ}, 7"); a(f"s_add_u32 s{s}, s{s}, s{s+1}"); a(f"v_and_b32 v{t+2}, 3, v{vLANE}"); a(f"v_lshrrev_b32 v{t+3}, 5, v{vLANE}"); a(f"v_lshl_add_u32 v{t+2}, v{t+2}, 1, v{t+3}")
    a(f"v_lshl_add_u32 v{vSP}, v{t+2}, 4, s{s}"); a(f"v_and_b32 v{t+2}, 28, v{vLANE}"); a(f"v_lshl_add_u32 v{vSP}, v{t+2}, 26, v{vSP}")
    a(f"s_lshl_b32 s{s}, s{sRB}, 4"); a(f"s_add_u32 s{s}, s{s}, s{sJ}"); a(f"s_lshl_b32 s{s}, s{s}, 10"); a(f"v_add_u32 v{vSA}, s{s}, v{vL16}"); assert ST == 0
    a(f"s_lshl_b32 s{s}, s{sL}, 2"); a(f"s_add_u32 s{s}, s{s}, s{sW4}"); a(f"s_lshl_b32 s{s}, s{s}, 4"); a(f"s_add_u32 s{s}, s{s}, s{sJ}"); a(f"s_lshl_b32 s{s}, s{s}, 7"); a(f"s_add_u32 s{s}, s{s}, {CFL}")
    a(f"v_lshl_add_u32 v{vCF}, v{t}, 3, s{s}"); a(f"s_lshl_b32 s{s+1}, s{sRB}, 3"); a(f"s_add_u32 s{s}, s{s}, s{s+1}"); a(f"v_mov_b32 v{vCQ_}, s{s}")
    a(f"s_lshl_b32 s{s}, s{sL}, 4"); a(f"s_add_u32 s{s}, s{s}, s{sJ}"); a(f"s_mul_i32 s{s}, s{s}, {16*768}"); a(f"s_mul_i32 s{s+1}, s{sW4}, 192"); a(f"s_add_u32 s{s}, s{s}, s{s+1}"); a(f"s_add_u32 s{s}, s{s}, {CSP}")
    a(f"v_min_u32 v{t+2}, 11, v{t}"); a(f"v_lshlrev_b32 v{t+2}, 4, v{t+2}"); a(f"v_add_u32 v{vCW}, s{s+1}, v{t+2}")
    a(f"v_mul_u32_u24 v{t+3}, 3072, v{t+1}"); a(f"v_add3_u32 v{vGA}, v{t+2}, v{t+3}, s{s}")
    a(f"s_mul_i32 s{s+1}, s{sRB}, 768"); a(f"s_add_u32 s{s}, s{s}, s{s+1}"); a(f"v_lshl_add_u32 v{vCP}, v{vLANE}, 2, s{s}")
    a(f"v_cmp_gt_u32 vcc, 48, v{vLANE}"); a(f"v_mov_b32 v{t+2}, {OOB}"); a(f"v_cndmask_b32 v{vCP}, v{t+2}, v{vCP}, vcc")
    a(f"v_add_u32 v{vXW}, s{sMX}, v{vL16}")
    sum_setup(a, RSH, 3 if RSH == 1 else 1)
def sum_setup(a, RS=1, N0=3):
    s = sT[1]
    a(f"s_and_b32 s{sNS}, s{sRB}, {(1 << RS) - 1}"); a(f"s_add_u32 s{sNS}, s{sNS}, {N0}"); a(f"s_add_u32 s{s}, s{sRB}, {1 if ROT0 == 2 else 's%d' % sL}"); a(f"s_cmp_eq_u32 s{s}, 16"); a(f"s_cselect_b32 s{sNS}, 0, s{sNS}")
    a(f"s_bitcmp1_b32 0x92, s{sNS}"); a(f"s_mov_b32 s{s+1}, {WQ[0]}"); a(f"s_cselect_b32 s{s+1}, {WQ[1]}, s{s+1}"); a(f"s_mov_b32 s{s+2}, {WKV[0] - 8192}"); a(f"s_cselect_b32 s{s+2}, {WKV[1] - 8192}, s{s+2}")
    a(f"s_bitcmp1_b32 0x124, s{sNS}"); a(f"s_cselect_b32 s{s+1}, {WQ[2]}, s{s+1}"); a(f"s_cselect_b32 s{s+2}, {WKV[2] - 8192}, s{s+2}")
    for c in range(3):
        a(f"s_mul_i32 s{s}, s{sW4}, 3"); a(f"s_add_u32 s{s}, s{s}, {c}"); a(f"s_and_b32 s{s+3}, s{s}, 3"); a(f"s_lshl_b32 s{s+3}, s{s+3}, 5"); a(f"v_xor_b32 v{vHA+c}, s{s+3}, v{vTR}")
        a(f"s_lshr_b32 s{s}, s{s}, 2"); a(f"s_lshl_b32 s{s+3}, s{s}, 13"); a(f"s_add_u32 s{s+3}, s{s+3}, s{s+2}"); a(f"s_cmp_eq_u32 s{s}, 0"); a(f"s_cselect_b32 s{s+3}, s{s+1}, s{s+3}")
        a(f"v_add_u32 v{vHA+c}, s{s+3}, v{vHA+c}")
def loader_step(a):
    for v, d in ((vXF, 2048 - (RFL - XFL)), (vXP, 2048 - (RFL - XFL)), (vS2, 32768), (vSP, 32768), (vTA, 32768)): a(f"v_add_u32 v{v}, {d & 0xffffffff}, v{v}")
    a(f"s_mov_b32 s{sNS}, 99")
    l = a.sif(sL, "eq", 1)
    for v, d in ((vCF, 8192), (vCQ_, 8192), (vGA, 16*16*768), (vCP, 16*16*768)): a(f"v_add_u32 v{v}, {d}, v{v}")
    sum_setup(a); loader_setup_x(a, False); a(f"s_mov_b64 {sr(sKT,2)}, {sr(sKN,2)}"); a(f"s_mov_b32 s{sXSH}, 12")
    a.label(l)
def colsum_sub(a):
    a.label("L_colsum")
    for c in range(3):
        for ks in range(2):
            for hf in range(2): a(f"ds_read_b64_tr_b16 {vr(HR+8*c+4*ks+2*hf,2)}, v{vHA+c} offset:{(4*ks+2*hf)*1024}")
    for c in range(3): sel_rows(a, HS + 4 * c, 15, 4 * c)
    a("s_waitcnt lgkmcnt(0)")
    for m in range(6): a(M(HD, HS + 4 * (m >> 1), HR + 4 * m, HD if m else "0"))
    a(f"buffer_store_dword v{HD}, v{vCP}, {sr(sWS)}, 0 offen sc1")
    a(f"s_setpc_b64 {sr(sRA,2)}")

def loader(a):
    s = sT[1]; S = S_
    vm = VM(a); ds = [False]
    look = lambda n: [f"ds_read_b128 {vr(XR+4*k,4)}, v{vXW} offset:{XB[n % 3] + k*1024}" for k in range(4)]
    def xcheck(n):
        a("s_waitcnt lgkmcnt(0)")
        t = Asm(); kidx(t, n, s); t(f"s_lshl_b32 s{s}, s{s}, 12")
        a.retry([XR + 4 * k for k in range(4)], XR + 1, "x", [x.strip() for x in t.lines] + dma_x(n, s) + ["s_waitcnt vmcnt(0)"] + look(n) + ["s_waitcnt lgkmcnt(0)"])
    def hook(n):
        l = a.sif(sNS, "eq", n); a(f"s_call_b64 {sr(sRA,2)}, L_colsum"); a.label(l); vm.add("opt")
    def bar(n):
        vm.wait(("st", n)); a("s_barrier")
    def only(L, reg, cond, imm):
        l = a.newlabel("Lon"); return [f"s_cmp_{cond}_u32 s{reg}, {imm}", f"s_cbranch_scc0 {l}"] + L + [l + ":"]
    def lines(f):
        t = G(False); t.nlab = a.nlab + 1000 * (1 + len(a.lines)); f(t); a.tail += t.tail; return [x.strip() for x in t.lines]
    pend = []
    def units(L, cond=None, FRATE=FRATE):
        if cond: pend.append([f"s_cmp_{cond[1]}_u32 s{cond[0]}, {cond[2]}", "s_cselect_b64 vcc, -1, 0"])
        for k in range(0, len(L), FRATE):
            u = sum(([x] if isinstance(x, str) else x for x in L[k:k + FRATE]), [])
            if cond: l = a.newlabel("Lu"); u = [f"s_cbranch_vccz {l}"] + u + [l + ":"]
            pend.append(u)
    def step(n, at={}, sc=(), wfirst=False):
        kstage(a, n + 2); X = dma_x(n + 2); D = [[X[0], X[1]]] + [[x] for x in X[2:]]
        t = G(False); dma_w(t, n + 2); W_ = [x.strip() for x in t.lines]
        for seg in range(3): D += [W_[3*seg:3*seg+2], [W_[3*seg+2]]]
        if wfirst: D = D[4:] + D[:4]
        sc = list(sc); k2 = -(-len(sc) // len(D))
        for k, d in enumerate(D):
            if k in at: at[k]()
            a.all(d[:-1]); a.all(sc[k * k2:(k + 1) * k2]); a(d[-1]); vm.add(("x", n + 2) if k < 4 and not wfirst else ("st", n + 2))
            if pend:
                u = pend.pop(0)
                if callable(u): u()
                else: a.all(u)
        if len(D) in at: at[len(D)]()
    def xlook(n):
        def f(): l = a.sif(sL, "lg", 0); q = list(vm.q); vm.L = (1, 2, 3); vm.wait(("x", n)); a.all(look(n)); a.label(l); vm.q = q; vm.L = (0, 1, 2, 3)
        return f
    assert NREG < 3
    l0 = a.sif(sL, "lg", 0); kstage(a, 1, w=False); a.all(dma_x(1)); a.label(l0)
    kstage(a, 2); a.all(dma_x(2))
    l0 = a.sif(sL, "lg", 0); a("s_waitcnt vmcnt(4)"); a.all(look(1)); a.label(l0)
    dma_w(a, 2, segs=range(W2N))
    l0 = a.sif(sL, "lg", 0); xcheck(1); a.stamp("l", "x1"); a.label(l0)
    hook(0)
    a(f"s_waitcnt vmcnt({4 + 2*W2N})")
    vm.q = []; vm.add(("x", 2), 4); vm.add(("st", 2), 6)
    def finish_rows(t):
        for rot in (4, 8):
            for i in range(4): t(f"v_add_f32_dpp v{S+i}, v{S+i}, v{S+i} row_ror:{rot} row_mask:0xf bank_mask:0xf")
        t(f"v_permlane32_swap_b32 v{S}, v{S+2}"); t(f"v_permlane32_swap_b32 v{S+1}, v{S+3}")
        t(f"v_add_f32 v{S}, v{S}, v{S+2}"); t(f"v_add_f32 v{S+1}, v{S+1}, v{S+3}")
        t(f"v_mov_b32 v{S+2}, v{S}"); t(f"v_mov_b32 v{S+3}, v{S+1}")
        t(f"v_permlane16_swap_b32 v{S}, v{S+2}"); t(f"v_permlane16_swap_b32 v{S+1}, v{S+3}")
        t(f"v_add_f32 v{S}, v{S}, v{S+2}"); t(f"v_add_f32 v{S+1}, v{S+1}, v{S+3}")
        t(f"v_mul_f32 v{S+5}, 0xba800000, v{S}"); t(f"v_mul_f32 v{S+1}, 0x3a800000, v{S+1}")
        t(f"v_fma_f32 v{S+1}, -v{S+5}, v{S+5}, v{S+1}"); t(f"v_max_f32 v{S+1}, 0, v{S+1}"); t(f"v_add_f32 v{S+1}, 0x3727c5ac, v{S+1}")
        t(f"v_rsq_f32 v{S+4}, v{S+1}"); t(f"v_mov_b32 v{S+6}, s{sN0}"); t(f"v_mov_b32 v{S+7}, s{sN1}"); t(f"v_mul_f32 v{S+5}, v{S+5}, v{S+4}")
    def sums(t):
        G = G_
        for i in range(8): t(f"v_add_f32 v{G+i}, v{G+i}, v{G+8+i}")
        for i in range(4): t(f"v_add_f32 v{CSK+i}, v{G+i}, v{G+4+i}")
        for sw in ("16", "32"):
            for i in range(4): t(f"v_mov_b32 v{G+i}, v{CSK+i}")
            for i in range(4): t(f"v_permlane{sw}_swap_b32 v{CSK+i}, v{G+i}")
            for i in range(4): t(f"v_add_f32 v{CSK+i}, v{CSK+i}, v{G+i}")
    s2ld = f"buffer_load_dwordx4 {vr(S,4)}, v{vS2}, {sr(sWS)}, 0 offen sc1"
    for n in range(1, 14):
        bar(n); at = {}; sc = []
        if n == 1: a.all(only(lines(lambda t: t.post(vXP, FT, False)), sW4, "eq", 0)); dma_w(a, 2, segs=range(W2N, 3)); vm.add("opt")
        if n == 2: a(f"buffer_load_dwordx2 {vr(FT+4,2)}, v{vXF}, {sr(sWS)}, 0 offen sc1"); vm.add("XF")
        if n == S1N: a.all(only([f"buffer_load_dwordx4 {vr(S,4)}, v{vSA}, {sr(sWS)}, 0 offen sc1"], sW4, "eq", 3)); vm.add("opt")
        if n == S1N + 2:
            assert not pend and n >= 5
            units(lines(finish_rows) + [lines(lambda t: t.stores([f"buffer_store_dwordx4 {vr(S+4,4)}, v{vSP}, {sr(sWS)}, 0 offen"]))], (sW4, "eq", 3), FR1)
        if n == S2N: assert not pend; a(s2ld); vm.add("S2")
        if n == CLD: a.all(only([f"buffer_load_dwordx2 {vr(FT+4,2)}, v{vCF}, {sr(sWS)}, 0 offen sc1"], sL, "lt", 2)); vm.add("CF", 1, (0, 1))
        if n == S2N + 1:
            pend.append(lambda: vm.wait("S2"))
            pend.append(lambda: a.retry([S + 2], S + 4, "f", [s2ld, "s_waitcnt vmcnt(0)"]))
            units([f"v_lshrrev_b32 v{S+4}, 5, v{vLANE}", f"v_lshl_add_u32 v{S+4}, v{S+4}, 2, v{vS2}"])
            def tabs():
                a(f"s_lshr_b32 s{s}, s{sMX}, 4"); a(f"s_add_u32 m0, s{s}, {TAB}"); a(f"buffer_load_dword v{S+4}, {sr(sWS)}, 0 offen sc1 lds")
                a(f"s_add_u32 m0, s{s}, {TAB + 1024}"); a(f"buffer_load_dword v{vTA}, {sr(sWS)}, 0 offen sc1 lds"); vm.add("tab", 2)
            at[6] = tabs
        if n == CLD + 1:
            def gather():
                l = a.sif(sL, "lt", 2); q = list(vm.q); vm.L = (0, 1); vm.wait("CF"); vm.q = q; vm.L = (0, 1, 2, 3); a.flagwait(vCF, FT + 4)
                for i in range(4): a(f"buffer_load_dwordx4 {vr(G_+4*i,4)}, v{vGA}, {sr(sWS)}, 0 offen offset:{i*768} sc1")
                a.label(l); vm.add("G", 4, (0, 1))
            pend.append(gather)
        if n == CLD + 3:
            assert not vm.has("G") and not pend
            units(lines(sums), (sL, "lt", 2))
            units([f"v_add_u32 v{S+6}, {TAB + 2048}, v{vCW}", f"v_mov_b32 v{S+7}, s{sFAST}", f"v_mov_b32 v{S+8}, {TAB + 2816}"])
        if HOT and WOHOT <= n < WOHOT + WOHN:
            if n == WOHOT: sc += lines(lambda t: hot_col(t, s + 1, sWO)) + [f"s_lshl_b32 s{s+1}, s{s+1}, 7", f"s_lshl_b32 s{s+2}, s{s+2}, 15", f"s_add_u32 s{sT[9]}, s{s+1}, s{s+2}"]
            sc += touch(sWO, sT[9], [k * 2048 for k in range(n - WOHOT, 16, WOHN)])
        if n >= 5: sc += hot(n + HOTD)
        if n == 5: sc += [f"s_lshl_b32 s{s}, s{sL}, 4", f"s_add_u32 s{s}, s{s}, s{sRB}", f"s_lshl_b32 s{s}, s{s}, 4", f"s_add_u32 s{s}, s{s}, s{sJ}", f"s_lshl_b32 s{s}, s{s}, 7"] + touch(sWS, s, [ST2])
        if n == FT8: sc += [f"s_lshl_b32 s{s}, s{sL}, 4", f"s_add_u32 s{s}, s{s}, s{sRB}", f"s_lshl_b32 s{s}, s{s}, 7"] + touch(sWS, s, [RFL])
        def slow():
            if n in RST and not NORST:
                k = RST.index(n); l = a.sif(sL, "eq", 0)
                P = [f"buffer_store_dwordx4 {vr(MRK + 4*(m >> 2),4)}, v{vL16}, {sr(sXD if m >> 2 else sTS)}, s{sOB} offen offset:{(m&3)*1024}" for m in range(8)][k::len(RST)]
                if RSTF: a.all([x + " sc1" for x in P])
                else: a.stores(P)
                vm.add("rst", len(P), (0,))
                if k < 2:
                    a(f"s_lshl_b32 s{s+5}, s{sJ}, 2"); a(f"s_add_u32 s{s+5}, s{s+5}, s{sW4}"); a(f"s_lshl_b32 s{s+5}, s{s+5}, 10"); a(f"s_add_u32 s{s+5}, s{s+5}, s{sRG}"); a(f"s_add_u32 s{s+5}, s{s+5}, {HALO + k*64*KB}")
                    a(f"buffer_store_dwordx4 {vr(MRK,4)}, v{vL16}, {sr(sWS)}, s{s+5} offen sc1"); vm.add("rst", 1, (0,)); assert n <= 4
                a.label(l)
            if n == CPOST:
                a.all(only(lines(lambda t: t.post(vCQ_, FT, True)), sL, "lt", 2)); vm.add("flag", 1, (0, 1))
                l = a.sif(sL, "eq", min(1, NL - 1)); a(f"s_or_b32 s{s+5}, s2, s{sW4}"); a(f"s_cmp_lg_u32 s{s+5}, 0"); a(f"s_cbranch_scc1 {l}")
                a(f"v_mov_b32 v{FT+2}, {NONCE}"); a.post(FT + 2, FT, True); a.label(l); vm.add("opt")
        def xflags():
            vm.wait("XF"); a.flagwait(vXF, FT + 4)
            l = a.sif(sL, "eq", 0)
            a(f"v_cmp_ne_u32 vcc, s{sN1}, v{FT+5}"); a("s_cmp_eq_u64 vcc, 0"); a(f"s_cselect_b32 s{sFAST}, {0 if FORCE_SLOW else 1}, 0"); a.label(l)
            a.acquire(); a.stamp("l", "xf")
        def xchk(): l = a.sif(sL, "lg", 0); xcheck(n + 1); a.label(l)
        if n <= 3: at[LOOKAT] = xlook(n + 1); at[LOOKAT + 2] = xchk
        if n == 3: at[2] = xflags
        step(n, at, sc, n == 3)
        if n == 1: a.stamp("l", "x2")
        slow()
        if n in (3, 4) or (RSH > 1 and n <= min(7, 1 << RSH)): assert n + 3 <= CPOST and (n < 5 or not pend); hook(n)
        if HOTE and n < 5: a.all(hot(n + HOTD))
        if WARM == 2 and 5 <= n <= 12:
            l = a.sif(sL, "eq", 0)
            a(f"s_lshl_b32 s{s}, s2, 2"); a(f"s_add_u32 s{s}, s{s}, s{sW4}")
            a(f"s_lshl_b32 s{s+3}, s{s}, 11"); a.all(touch(sWO, s + 3, [(2 * (n - 5) + k) * 128 for k in range(2)]))
            for k in range(2): a(f"s_load_dword s{sT[12]}, {sr(pWOB,2)}, s{s+3} offset:{(2 * (n - 5) + k) * 128}")
            a(f"s_mul_i32 s{s}, s{s}, 6144"); a.all(touch(sWN, s, [(6 * (n - 5) + k) * 128 for k in range(6)]))
            a.label(l)
    assert not vm.has("rst")
    tabw = pend; tab2 = [f"ds_write_b128 v{S+6}, {vr(CSK,4)}"]; assert not vm.has("tab")
    def keep():
        for i in range(4): a(f"v_swap_b32 v{CSK+i}, v{CSK+4+i}")
    def rpost():
        a(f"v_add_u32 v{vXF}, {RFL - XFL}, v{vXF}"); a(f"v_add_u32 v{vXP}, {RFL - XFL}, v{vXP}")
        l = a.sif(sW4, "eq", 0); a.post(vXP, FT, False); a.label(l); vm.add("opt")
    q0 = list(vm.q)
    a(f"s_bitcmp1_b32 s{sL}, 0"); a("s_cbranch_scc1 L_lB")
    vm.L = (0, 2); wp = [0]
    def wo_l2(cnt):
        for p in range(wp[0], wp[0] + cnt):
            a(f"s_xor_b32 s{s}, s{sT[9]}, {wohead(p) << 16}"); a.all(touch(sWO, s, [k * 2048 for k in range(4)]))
        wp[0] += cnt
    a(f"s_and_b32 s{s}, s{sRB}, 1"); a(f"s_lshl_b32 s{s}, s{s}, 2"); a(f"s_add_u32 s{s}, s{s}, s{sW4}"); a(f"s_lshl_b32 s{s}, s{s}, 13"); a(f"s_lshl_b32 s{s+1}, s{sJ}, 7"); a(f"s_add_u32 s{s}, s{s}, s{s+1}"); a(f"s_add_u32 s{sT[9]}, s{s}, s{sWR}")
    bar(14)
    if WOV:
        a(f"v_lshrrev_b32 v{TMP}, 2, v{vLANE}"); a(f"v_add_u32 v{TMP}, {sum(WSP)}, v{TMP}"); a(f"v_and_b32 v{TMP+1}, 1, v{TMP}"); a(f"v_lshrrev_b32 v{TMP+2}, 2, v{TMP}"); a(f"v_lshl_add_u32 v{TMP+1}, v{TMP+2}, 1, v{TMP+1}")
        a(f"v_bfe_u32 v{TMP}, v{TMP}, 1, 1"); a(f"v_lshl_add_u32 v{TMP}, v{TMP}, 4, v{TMP+1}"); a(f"v_lshlrev_b32 v{TMP}, 16, v{TMP}"); a(f"v_xor_b32 v{TMP}, s{sT[9]}, v{TMP}")
        a(f"v_and_b32 v{TMP+1}, 3, v{vLANE}"); a(f"v_lshl_add_u32 v{TMP}, v{TMP+1}, 11, v{TMP}")
        m = (1 << (4 * WOV)) - 1; a(f"s_mov_b32 exec_lo, {m & 0xffffffff}"); a(f"s_mov_b32 exec_hi, {m >> 32}"); a(f"buffer_load_dword v{vDUM}, v{TMP}, {sr(sWO)}, 0 offen"); a("s_mov_b64 exec, -1"); vm.add("warm")
    a.all(sum(tabw, []))
    wo_l2(WSP[0] + WSP[1])
    l = a.sif(sL, "eq", 0); a(f"s_mov_b64 {sr(sXS,2)}, {sr(sTS,2)}"); loader_setup_w(a, False); a.label(l)
    bar(15)
    a.all(tab2 + [f"ds_write_b32 v{S+8}, v{S+7}"]); rpost(); wo_l2(WSP[2])
    a("s_waitcnt lgkmcnt(0)"); a("s_barrier")
    a.stamp("l", "b16")
    for r in range(NREG if NL > 1 else 0):
        kidx(a, r, s, True); a(f"s_mul_i32 s{s}, s{s}, {WSTEP}")
        for m in range(6 * r, 6 * r + 6): a(pre_w(m, s))
    keep(); masks_A(a); att_setup(a); wo_l2(WSP[3])
    a.stamp("l", "kv")
    if LPRIO != APRIO: a(f"s_setprio {APRIO}")
    a("s_branch L_attA")
    a.label("L_lB")
    vm.q = q0; vm.L = (1, 3); assert sorted(sum(WOB, [])) == list(range(32))
    bar(14)
    tabw = [[x.replace("Lu_", "Lv_") for x in u] for u in tabw]
    for k, p in enumerate(WOB[0]): wo_piece(a, [p]); a.all(sum(tabw[k:k+1] if k + 1 < len(WOB[0]) else tabw[k:], []))
    vm.add("wo", len(WOB[0]))
    bar(15)
    a.all(tab2); rpost(); wo_piece(a, WOB[1])
    a("s_waitcnt lgkmcnt(0)"); a("s_barrier")
    a.stamp("l", "b16")
    wo_piece(a, WOB[2]); keep()
    a(f"buffer_load_dwordx2 {vr(FT+4,2)}, v{vXF}, {sr(sWS)}, 0 offen sc1")
    a(f"s_lshl_b32 s{s}, s{sW4}, 10"); a(f"s_add_u32 s{s+1}, s{s}, {QX}"); a(f"v_add_u32 v{S}, s{s+1}, v{vL16}")
    for r in range(4): a(f"v_mov_b32 v{32+r}, 0")
    l = a.sif(sRB, "lg", 0)
    a(f"s_lshr_b32 s{s+1}, s{sL}, 1"); a(f"s_lshl_b32 s{s+1}, s{s+1}, 4"); a(f"s_add_u32 s{s+1}, s{s+1}, s{sJ}"); a(f"s_lshl_b32 s{s+1}, s{s+1}, 12"); a(f"s_add_u32 s{s}, s{s}, s{s+1}")
    a(f"s_add_u32 s{s}, s{s}, s{sRG}"); a(f"s_sub_u32 s{s}, s{s}, {MB - HALO}")
    get = [f"buffer_load_dwordx4 {vr(32,4)}, v{vL16}, {sr(sWS)}, s{s} offen sc1", "s_waitcnt vmcnt(0)"]
    a.all(get); a.retry([32], S + 1, "h", get)
    a.label(l)
    a(f"ds_write_b128 v{S}, {vr(32,4)}")
    a.stamp("l", "kv")
    a("s_waitcnt vmcnt(0)"); a.flagwait(vXF, FT + 4); a.acquire()
    a("s_waitcnt lgkmcnt(0)"); a("s_barrier")
    wo_piece(a, WOB[3])
    a("s_branch L_lnext")

def loader_next(a):
    s = sT[1]
    a.label("L_lnext")
    def spref(L):
        for n in L:
            kidx(a, n, s, True); a(f"s_lshl_b32 s{s}, s{s}, 2"); a(f"s_add_u32 s{s}, s{s}, s{sW4}"); a(f"s_lshl_b32 s{s}, s{s}, 1"); a(f"s_and_b32 s{s+1}, s{sRB}, 1"); a(f"s_add_u32 s{s}, s{s}, s{s+1}")
            a(f"s_mul_i32 s{s}, s{s}, {8*6144}"); a(f"s_lshl_b32 s{s+1}, s{sJ}, 7"); a(f"s_add_u32 s{s}, s{s}, s{s+1}")
            a.all(touch(sW, s, [k * 2048 for k in range(24)]))
    a(f"s_add_u32 s{sL}, s{sL}, 1")
    if APRIO: a("s_setprio 0")
    a(f"s_cmp_eq_u32 s{sL}, {NL}"); a("s_cbranch_scc1 L_lfinal")
    def xt():
        a.all(touch(sXS, sOB, [k * 128 for k in range(32)]))
        a(f"s_lshl_b32 s{s}, s{sRB}, 4"); a(f"s_add_u32 s{s}, s{s}, s{sJ}"); a(f"s_lshl_b32 s{s}, s{s}, 2"); a(f"s_add_u32 s{s}, s{s}, s{sW4}"); a(f"s_lshl_b32 s{s}, s{s}, 8"); a.all(touch(sWS, s, [0, 128]))
        a(f"s_lshl_b32 s{s}, s{sL}, 4"); a(f"s_add_u32 s{s}, s{s}, s{sRB}"); a(f"s_lshl_b32 s{s}, s{s}, 7"); a.all(touch(sWS, s, [XFL]))
    set_wo(a)
    a(f"s_cselect_b32 s{sW}, s{pWB}, s{pWA}"); a(f"s_cselect_b32 s{sW+1}, s{pWB+1}, s{pWA+1}"); a(f"s_cselect_b32 s{sWN}, s{pWA}, s{pWB}"); a(f"s_cselect_b32 s{sWN+1}, s{pWA+1}, s{pWB+1}")
    a.all(swap_bufs())
    for k, job in enumerate(G2J):
        if job == "S": a("s_waitcnt vmcnt(0)"); a("s_barrier")
        elif job == "x": xt()
        elif job == "h":
            for n in range(max([-1] + [int(c) for c in G2J if c.isdigit()]) + 1, HOTD + (1 if HOTE else 5)): a.all(hot(n))
        else: spref([int(job)])
        if k == 0: loader_step(a); hot_setup(a, False)
    PST or a.stamp("l", "sp", 1)
    a(f"v_add_u32 v{S_}, s{sMW}, v{vL16}"); a(f"v_add_u32 v{S_+1}, {64*KB}, v{S_}")
    a("s_barrier")
    PST or a.stamp("l", "S3", 1)
    for n in range(NREG, 2): kstage(a, n, x=False); dma_w(a, n)
    for m in range(6 * NREG):
        o = wseg(m // 6, (m % 6) >> 1) + (m & 1) * 1024
        a(f"ds_write_b128 v{S_ + (o >= 64*KB)}, {vr(WPRE+4*m,4)} offset:{o % (64*KB)}")
    a("s_waitcnt lgkmcnt(0)" if NREG else "s_waitcnt vmcnt(6)")
    a("s_barrier")
    a.stamp("l", "B0")
    a("s_branch L_lbody")
    a.label("L_lfinal")
    a("s_waitcnt vmcnt(0)"); a("s_barrier")
    if WBL:
        a(f"s_lshr_b32 s{s}, s2, 3"); a(f"s_add_u32 s{s}, s{s}, s{sW4}"); l = a.sif(s, "eq", 0); a("buffer_wbl2 sc1"); a.label(l)
    a("s_barrier")
    a("s_branch L_out")

def acc(j, i): return ACC + (j * 4 + i) * 4
xfr = lambda p, i: FR + p * 40 + 4 * i
wfr = lambda p, j: FR + p * 40 + 16 + 4 * j
ALL, KVS = (0, 1, 2, 3, 4, 5), (2, 3, 4, 5)
class LQ:
    def __init__(self, a): self.a = a; self.q = []; self.t = 0
    def issue(self, x):
        self.a(x); self.q.append((hazard.I(x).d, self.t))
    def need(self, regs, extra=""):
        hit = [k for k, (d, t) in enumerate(self.q) if d & regs]
        if not hit: return
        n = min(len(self.q) - 1 - hit[-1], len([1 for d, t in self.q if t > self.t - 6]), 15)
        self.a(f"s_waitcnt lgkmcnt({n})"); self.q = self.q[len(self.q) - n:]
    def drain(self, extra=""):
        if self.q or extra: self.a("s_waitcnt" + extra + (" lgkmcnt(0)" if self.q else ""))
        self.q = []
def rd_x(d, n, ks, i): return f"ds_read_b128 {vr(d,4)}, v{AX+ks} offset:{XB[n % 3] + i*2048}"
def rd_w(d, n, ks, j):
    o = wseg(n, j >> 1) - WKV[0]; hi = o >= 48 * KB
    return [f"ds_read_b64_tr_b16 {vr(d+2*hf,2)}, v{AW + 2*hi + (j&1)} offset:{o - hi*48*KB + (4*ks+2*hf)*1024}" for hf in range(2)]
def c_reads(p, n, ks, js):
    return [rd_x(xfr(p,0), n, ks, 0)] + rd_w(wfr(p,js[0]), n, ks, js[0]) + [rd_x(xfr(p,i), n, ks, i) for i in range(1, 4)] + sum((rd_w(wfr(p,j), n, ks, j) for j in js[1:]), [])
def serp(js): return [(j, i if k % 2 == 0 else 3 - i) for k, j in enumerate(js) for i in range(4)]
def c_step(lq, p, order, nxt, bar=None, init=False, fill=(), vm="", X=None, W=None, f0=None, fr=1):
    a = lq.a; nxt, fill = list(nxt), list(fill); X = X or xfr; W = W or wfr
    b0 = bar or 0; gaps = max(1, min(len(nxt), len(order) - 4 - b0) if len(order) > 8 else len(order))
    done = 0
    for m, (j, i) in enumerate(order):
        if bar is not None and m == bar: lq.drain(vm); a("s_barrier")
        A, B = (W(p,j), X(p,i)) if j < 4 else (X(p,i), W(p,j))
        x = M(acc(j,i), A, B, "0" if init else acc(j,i)); lq.need(hazard.I(x).u); a(x)
        k = 0 if m < b0 else min(len(nxt), -(-(m - b0 + 1) * len(nxt) // gaps))
        for r in nxt[done:k]: lq.issue(r)
        if (k == done and m >= b0 and f0 is None) or (f0 is not None and m >= f0):
            for _ in range(fr if f0 is None else 2):
                if fill:
                    y = fill.pop(0)
                    if isinstance(y, str): lq.need(hazard.I(y).u); (lq.issue if y.startswith("ds_") else a)(y)
                    else: y()
        done = max(done, k); lq.t += 1
    assert done == len(nxt)
    return fill
def c_setup(a, first):
    s = sT[1]
    a(f"s_lshr_b32 s{s}, s{sWID}, 1"); a(f"s_lshl_b32 s{s}, s{s}, 13")
    if first:
        a(f"v_and_b32 v{AX}, 15, v{vLANE}"); a(f"v_bfe_u32 v{AX+1}, v{vLANE}, 1, 3"); a(f"v_lshrrev_b32 v{AW}, 4, v{vLANE}"); a(f"v_xor_b32 v{AX+1}, v{AX+1}, v{AW}")
        a(f"v_lshlrev_b32 v{AX}, 7, v{AX}"); a(f"v_lshlrev_b32 v{AX+1}, 4, v{AX+1}"); a(f"v_add3_u32 v{AX}, v{AX}, v{AX+1}, s{s}"); a(f"v_xor_b32 v{AX+1}, 64, v{AX}")
    else: a(f"v_add_u32 v{AX}, s{s}, v{vL16}"); a(f"v_add_u32 v{AX+1}, 1024, v{AX}"); a(f"v_and_b32 v{vST}, {2*OOB - 1}, v{vST}")
def c_once(a):
    s = sT[1]; t = 24
    a(f"s_and_b32 s{s}, s{sWID}, 1"); a(f"s_lshl_b32 s{s+1}, s{s}, 6"); a(f"v_xor_b32 v{AW}, s{s+1}, v{vTR}"); a(f"v_xor_b32 v{AW+1}, 32, v{AW}")
    for k in (0, 1): a(f"v_add_u32 v{AW+2+k}, {WKV[0] + 48*KB}, v{AW+k}")
    for k in (0, 1): a(f"v_add_u32 v{AW+k}, {WKV[0]}, v{AW+k}")
    a(f"v_and_b32 v{t}, 15, v{vLANE}"); a(f"v_lshrrev_b32 v{t+1}, 4, v{vLANE}")
    a(f"s_lshl_b32 s{s}, s{s}, 7"); a(f"s_add_u32 s{s}, s{s}, {TAB + 2048}"); a(f"v_lshl_add_u32 v{vCQ}, v{t+1}, 4, s{s}"); a(f"v_lshl_add_u32 v{vCV}, v{t}, 2, s{s}")
    a(f"s_lshr_b32 s{s}, s{sWID}, 1"); a(f"s_lshl_b32 s{s}, s{s}, 9"); a(f"s_add_u32 s{s+1}, s{s}, {TAB}"); a(f"v_lshl_add_u32 v{vVT}, v{t+1}, 4, s{s+1}"); a(f"v_lshl_add_u32 v{vAB}, v{t}, 3, s{s+1}")
    a(f"s_lshl_b32 s{s}, s{sRB}, 2"); a(f"s_add_u32 s{s}, s{s}, s{sWID}"); a(f"s_lshl_b32 s{s}, s{s}, 4"); a(f"s_add_u32 s{s}, s{s}, s{sJ}"); a(f"s_lshl_b32 s{sXST}, s{s}, 12")
    a(f"s_lshr_b32 s{s}, s{s}, 4"); a(f"s_lshl_b32 s{sOLD}, s{s}, 16"); a(f"s_lshl_b32 s{s}, s{s}, 12"); a(f"s_lshl_b32 s{s+1}, s{sJ}, 6"); a(f"s_add_u32 s{s}, s{s}, s{s+1}")
    a(f"v_and_b32 v{t+4}, 7, v{t}"); a(f"v_lshl_add_u32 v{vST}, v{t+4}, 3, s{s}"); a(f"v_lshrrev_b32 v{t+4}, 3, v{t}"); a(f"v_lshl_add_u32 v{vST}, v{t+4}, 10, v{vST}"); a(f"v_lshrrev_b32 v{t}, 2, v{t}"); a(f"v_cmp_eq_u32 vcc, v{t}, v{t+1}"); a(f"v_mov_b32 v{t}, {OOB}"); a(f"v_cndmask_b32 v{vST}, v{t}, v{vST}, vcc")
    for k in range(2): a(f"s_mov_b32 s{sM1+k}, 0xaaaaaaaa"); a(f"s_mov_b32 s{sM2+k}, 0xcccccccc")
    a(f"s_sub_u32 s{s}, s{sA1}, {OWN - 4*8192}"); a(f"s_add_u32 s{sKVL}, s{s}, {OWN}"); a(f"s_lshl_b32 s{s+1}, s{sJ}, 15"); a(f"s_add_u32 s{s}, s{s}, s{s+1}"); a(f"s_add_u32 s{s}, s{s}, s{sRG}"); a(f"s_add_u32 s{sKVG}, s{s}, {KVA}")
    a(f"s_lshl_b32 s{s}, s{sJ}, 1"); a(f"s_add_u32 s{s}, s{s}, s{sWID}"); a(f"s_sub_u32 s{s}, s{s}, 2"); a(f"s_lshl_b32 s{s}, s{s}, 11"); a(f"s_add_u32 s{s}, s{s}, s{sRG}")
    a(f"s_cmp_ge_u32 s{sWID}, 2"); a(f"s_cselect_b32 s{sHG}, s{s}, {OOB}")
VA, VBT, CK, AB, CQ, CV, TM, MD_ = 120, 136, 152, 232, 240, 248, 250, 199
t_ab = lambda i: f"ds_read_b64 {vr(AB+2*i,2)}, v{vAB} offset:{1024 + i*128}"
t_c = lambda j: f"ds_read_b128 {vr((CQ if j < 2 else CK) + 4*(j&1),4)}, v{vCQ} offset:{(j>>1)*256 + (j&1)*64}"
t_cv = lambda d: f"ds_read_b32 v{CV+d}, v{vCV} offset:{512 + d*64}"
t_v = lambda i: [f"ds_read_b128 {vr(VA+4*i,4)}, v{vVT} offset:{(i>>1)*256 + (i&1)*64}", f"ds_read_b128 {vr(VBT+4*i,4)}, v{vVT} offset:{128 + (i>>1)*256 + (i&1)*64}"]
def e_qk(j0, i):
    L = []
    for p in range(4):
        r = acc(j0 + (p >> 1), i) + 2 * (p & 1); c = (CQ if j0 == 0 else CK) + 2 * p; ab = vr(AB + 2 * i, 2)
        L.append([bmul("@2", vr(c,2), AB + 2 * i + 1), f"v_pk_fma_f32 @2, {vr(r,2)}, {ab}, @2 op_sel_hi:[1,0,1]", f"v_cvt_pk_bf16_f32 v{acc(j0,i)+p}, @0, @1"])
    return L
def e_v(d, i, dst):
    L = []
    for p in range(2):
        r = acc(4 + d, i) + 2 * p
        L.append([bmul("@2", vr(VBT+4*i+2*p,2), CV + d), f"v_pk_fma_f32 @2, {vr(r,2)}, {vr(VA+4*i+2*p,2)}, @2", f"v_cvt_pk_bf16_f32 v{dst+p}, @0, @1"])
    return L
def skew(items):
    T = []; out = []
    for x in items:
        if len(x) == 3 and "@" in x[0]: T.append([x, []])
        else: T[-1][1] += x
    sub = lambda x, k: x.replace("@2", vr(TM + 2 * (k % 3), 2)).replace("@0", f"v{TM + 2*(k%3)}").replace("@1", f"v{TM + 2*(k%3) + 1}")
    for k in range(len(T) + 3):
        if 0 <= k - 2 < len(T): out.append(sub(T[k-2][0][2], k - 2))
        if 0 <= k - 1 < len(T): out.append(sub(T[k-1][0][1], k - 1))
        if k < len(T): out.append(sub(T[k][0][0], k))
        if 0 <= k - 2 < len(T): out += T[k-2][1]
    return out
def emit(lq, L):
    for y in L:
        if not isinstance(y, str): y(); continue
        c = hazard.I(y)
        lq.need(c.u | (c.d if not y.startswith("ds_") else set()))
        (lq.issue if y.startswith("ds_") else lq.a)(y)
        lq.t += 0.3
def get_mode(a): return [f"v_readfirstlane_b32 s{sFAST}, v{TM+5}"]

GS = 232
def stats_mfma(): return [M(GS + 8*rt + 4*u, SEL if u else XRES + 8*rt + 4*k, XRES + 8*rt + 4*k, GS + 8*rt + 4*u if k else "0") for k in range(2) for rt in range(2) for u in range(2)]
def stats_out(a):
    for rt in range(2):
        g = GS + 8 * rt
        a(f"v_cndmask_b32 v{g}, v{g}, v{g+1}, {sr(sM1,2)}"); a(f"v_cndmask_b32 v{g+2}, v{g+2}, v{g+3}, {sr(sM1,2)}")
    for rt in range(2): g = GS + 8 * rt; a(f"v_cndmask_b32 v{g+5}, v{g}, v{g+2}, {sr(sM2,2)}")
    a.stores([f"buffer_store_dwordx2 {vr(GS+8*rt+4,2)}, v{vST}, {sr(sWS)}, 0 offen offset:{rt*2048}" for rt in range(2)])
def consumer(a):
    s = sT[1]; lq = LQ(a)
    a.label("L_centry")
    a.all(stats_mfma())
    a("s_waitcnt lgkmcnt(0)")
    a.label("L_cfirst")
    a("s_barrier")
    a.stamp("c", "g1start")
    if a.stamps and TRACE: a("s_memrealtime s[74:75]" if RT else "s_memtime s[74:75]")
    for r in c_reads(0, 0, 0, ALL): lq.issue(r)
    stats_out(a)
    def trace(idx):
        if not (a.stamps and TRACE == 1): return
        a(f"s_sub_u32 s68, s74, s{80 if RT else sT0}"); a("s_memrealtime s[74:75]" if RT else "s_memtime s[74:75]")
        a(f"s_lshl_b32 s69, s{sL}, 4"); a(f"s_add_u32 s69, s69, s{sCNT}"); a(f"s_add_u32 m0, s69, {idx}"); a("v_writelane_b32 v7, s68, m0")
    S6, S4 = serp(ALL), serp(KVS)
    c_step(lq, 0, S6, c_reads(1, 0, 1, ALL), init=True, fill=[f"s_mov_b32 s{sCNT}, 0"] + swap_bufs())
    c_step(lq, 1, S6, c_reads(0, 1, 0, ALL), bar=BARM0, vm=" vmcnt(0)")
    trace(0)
    a.label("L_cloop")
    lq.drain()
    for n in (1, 2, 3):
        c_step(lq, 0, S6, c_reads(1, n, 1, ALL))
        c_step(lq, 1, S6, c_reads(0, n + 1, 0, ALL), bar=BARM, vm=" vmcnt(0)" if n == 2 else "", fill=[f"s_add_u32 s{sCNT}, s{sCNT}, 3", f"s_cmp_lt_u32 s{sCNT}, 12"] if n == 3 and not TRACE else [])
        trace(n)
    if TRACE: a(f"s_add_u32 s{sCNT}, s{sCNT}, 3"); a(f"s_cmp_lt_u32 s{sCNT}, 12")
    a("s_cbranch_scc1 L_cloop")
    a(f"s_bitcmp1_b32 s{sL}, 0"); a("s_cbranch_scc1 L_ctailB")
    q0 = list(lq.q); t0 = lq.t
    mode = [f"v_mov_b32 v{TM+5}, {TAB + 2816}", f"ds_read_b32 v{TM+5}, v{TM+5}"]
    t = Asm(); masks_A(t); fl = [x.strip() for x in t.lines]
    fl = c_step(lq, 0, S6, c_reads(1, 13, 1, KVS), fill=fl, fr=2)
    for n in (13, 14):
        fl = c_step(lq, 1, S4, c_reads(0, n + 1, 0, KVS), bar=0, fill=fl, fr=2); trace(n - 12); assert not fl
        c_step(lq, 0, S4, c_reads(1, n + 1, 1, KVS), fill=[f"v_add_u32 v{wfr(1,0)}, s{sKVL}, v{vL16}", f"s_add_u32 s{s}, s{sKVG}, 8192", mode[0]] if n == 14 else [])
    tr = [mode[1], t_c(2), t_c(3)] + [t_ab(i) for i in (2, 3, 0, 1)] + [t_cv(0), t_cv(1)] + t_v(2) + t_v(3) + t_v(0) + t_v(1) + [t_c(0), t_c(1)]
    c_step(lq, 1, S4, tr, bar=0); trace(3)
    a.stamp("c", "g1kv")
    vK = MD_
    a(f"v_mov_b32 v{vK}, v{wfr(1,0)}")
    def out(r, tt, f): return [f"buffer_store_dwordx4 {vr(r,4)}, v{vL16}, {sr(sWS)}, s{s if tt else sKVG} offen offset:{f*1024} sc1", f"ds_write_b128 v{vK}, {vr(r,4)} offset:{tt*8192 + f*1024}"]
    QB = [160, 120]
    QS = [(13, 1), (14, 0), (14, 1), (15, 0), (15, 1)]
    qx = lambda p, i: QB[p] + 4 * i; qw = lambda p, j: QB[p] + 16 + 4 * j
    def qrd(k): n, ks = QS[k]; p = k & 1; return [rd_x(qx(p,0), n, ks, 0)] + rd_w(qw(p,0), n, ks, 0) + [rd_x(qx(p,i), n, ks, i) for i in range(1, 4)] + rd_w(qw(p,1), n, ks, 1)
    it = []
    for tt in (1, 0):
        for h in range(2): it += e_qk(2, 2 * tt + h) + [out(acc(2, 2 * tt + h), tt, h)]
        if tt == 0: it += [qrd(0)]
        for d in range(2): it += e_v(d, 2 * tt, acc(4 + d, 2 * tt)) + e_v(d, 2 * tt + 1, acc(4 + d, 2 * tt) + 2) + [out(acc(4 + d, 2 * tt), tt, 2 + d)]
    emit(lq, get_mode(a) + skew(it))
    a.stamp("c", "epi")
    fl = [f"v_mul_f32 v{AB+k}, {QSCALE}, v{AB+k}" for k in range(8)] + [f"s_xor_b32 s{s}, s{sWID}, 2", f"s_lshl_b32 s{s}, s{s}, 11", f"s_add_u32 s{s}, s{s}, {QX}", f"v_add_u32 v{vK}, s{s}, v{vL16}"]
    def kpost():
        a(f"s_lshl_b32 s{s+1}, s{sL}, 4"); a(f"s_add_u32 s{s+1}, s{s+1}, s{sJ}"); a(f"s_lshl_b32 s{s+1}, s{s+1}, 4"); a(f"s_add_u32 s{s+1}, s{s+1}, s{sRB}"); a(f"s_lshl_b32 s{s+1}, s{s+1}, 4"); a(f"s_add_u32 s{s+1}, s{s+1}, s{sWID}")
        a(f"s_lshl_b32 s{s+1}, s{s+1}, 3"); a(f"s_add_u32 s{s+1}, s{s+1}, {KFL}"); a(f"v_mov_b32 v184, s{s+1}"); a("s_waitcnt vmcnt(0)"); a.post(184, 186, True)
    for k in range(5):
        if k == KPOST: kpost()
        o = serp((0, 1)) if k < 4 else [(0, 2), (1, 2), (1, 3), (0, 3), (0, 0), (1, 0), (1, 1), (0, 1)]
        r = c_step(lq, k & 1, o, qrd(k + 1) if k < 4 else [], X=qx, W=qw, fill=fl if k == 4 else [], f0=0 if k == 4 else None)
    assert not r
    if KPOST == 5: kpost()
    a.stamp("c", "qend")
    t = Asm(); att_setup(t); su = [x.strip() for x in t.lines]
    emit(lq, su + skew(e_qk(0, 2) + [[f"ds_write_b128 v{vK}, {vr(acc(0,2),4)}"]] + e_qk(0, 3) + [[f"ds_write_b128 v{vK}, {vr(acc(0,3),4)} offset:1024"]] + e_qk(0, 0) + e_qk(0, 1)))
    if KPOST == 6: kpost()
    a("s_branch L_attA")
    a.label("L_ctailB")
    lq.q = q0; lq.t = t0
    t = Asm(); masks_B(t); fl = [x.strip() for x in t.lines]
    fl += [f"s_lshl_b32 s{s}, s{sWID}, 11", f"s_add_u32 s{s}, s{s}, {QX}", f"v_add_u32 v{vWO[1]}, s{s}, v{vL16}", f"v_add_u32 v{vWO[2]}, s{sHG}, v{vL16}", f"s_add_u32 s{sHG}, s{sHG}, {64*KB}"]
    for n in (13, 14, 15):
        fl = c_step(lq, 0, S6, c_reads(1, n, 1, ALL), fill=fl, fr=2)
        if n < 15: fl = c_step(lq, 1, S6, c_reads(0, n + 1, 0, ALL), bar=BARM, fill=fl, fr=2); trace(n - 12)
    assert not fl
    attention_B(a, lq, mode[1], trace)

def d_qk(a, v):
    a(f"v_and_b32 v{v}, 15, v{vLANE}"); a(f"v_lshrrev_b32 v{v+1}, 4, v{vLANE}"); a(f"v_lshlrev_b32 v{v+1}, 2, v{v+1}"); a(f"v_sub_u32 v{v}, v{v}, v{v+1}")
def masks_A(a):
    s = sT[1]; t = MK + 8
    d_qk(a, t)
    a(f"s_cmp_lt_u32 s{sRB}, 2"); a(f"s_cselect_b32 s{s}, 0, -1")
    for r in range(4): a(f"v_subrev_u32 v{MK+r}, {r}, v{t}")
    for r in range(4): a(f"v_ashrrev_i32 v{MK+r}, 31, v{MK+r}")
    for r in range(4): a(f"v_and_b32 v{MK+r}, {BIG}, v{MK+r}")
    for r in range(4): a(f"v_and_b32 v{MK+4+r}, s{s}, v{MK+r}")
    for r in range(4): a(f"v_xor_b32 v{MK+4+r}, {BIG}, v{MK+4+r}")
    for r in range(4): a(f"v_mov_b32 v{MK+8+r}, 0")
def masks_B(a):
    s = sT[1]; t = MK + 12
    d_qk(a, t)
    for r in range(4): a(f"v_subrev_u32 v{MK+8+r}, {r}, v{t}")
    for r in range(4): a(f"v_lshlrev_b32 v{MK+4+r}, 31, v{MK+8+r}")
    for r in range(4): a(f"v_or_b32 v{MK+r}, v{MK+4+r}, v{MK+8+r}"); a(f"v_not_b32 v{MK+8+r}, v{MK+8+r}")
    for r in range(4): a(f"v_or_b32 v{MK+4+r}, v{MK+4+r}, v{MK+8+r}")
    for r in range(8): a(f"v_ashrrev_i32 v{MK+r}, 31, v{MK+r}")
    a(f"s_mov_b32 s{s}, 0xffff")
    for p in range(4): q = MK + (4 if p < 2 else 0) + 2 * (p & 1); a(f"v_bfi_b32 v{MK+8+p}, s{s}, v{q}, v{q+1}")
    for p in range(4): a(f"v_not_b32 v{MK+8+p}, v{MK+8+p}")
    for r in range(8): a(f"v_and_b32 v{MK+r}, {BIG}, v{MK+r}")
    a(f"s_lshr_b32 s{s}, s{sWID}, 1"); a(f"s_or_b32 s{s}, s{s}, s{sRB}"); a(f"s_cmp_eq_u32 s{s}, 0"); a(f"s_cselect_b32 s{s}, {BIG}, 0")
    for r in range(4): a(f"v_or_b32 v{MK+12+r}, s{s}, v{MK+4+r}")
def att_once(a):
    s = sT[1]
    a(f"s_lshl_b32 s{s}, s{sWID}, 2"); a(f"s_lshr_b32 s{sTL}, 0x11332200, s{s}"); a(f"s_and_b32 s{sTL}, s{sTL}, 3"); a(f"s_and_b32 s{s}, s{sWID}, 1")
    a(f"s_lshl_b32 s{s+1}, s{sTL}, 1"); a(f"s_add_u32 s{s+1}, s{s+1}, s{s}"); a(f"s_and_b32 s{sWI}, s{s+1}, 3"); a(f"s_lshl_b32 s{s+1}, s{s+1}, 12"); a(f"s_add_u32 s{sA1}, s{s+1}, {OWN - 4*8192}")
    a(f"s_lshl_b32 s{s+1}, s{sJ}, 1"); a(f"s_add_u32 s{s+1}, s{s+1}, s{s}"); a(f"s_lshl_b32 s{s+1}, s{s+1}, 11"); a(f"s_lshl_b32 s{s+2}, s{sTL}, 16"); a(f"s_add_u32 s{s+1}, s{s+1}, s{s+2}"); a(f"s_lshl_b32 s{s+2}, s{sRB}, 18"); a(f"s_add_u32 s{sOST}, s{s+1}, s{s+2}")
    a(f"s_lshr_b32 s{s+1}, s{sTL}, 1"); a(f"s_add_u32 s{s+1}, s{s+1}, 1"); a(f"s_cmp_lt_u32 s{sRB}, s{s+1}"); a(f"s_cselect_b32 s{s+1}, 0, s{s+1}"); a(f"s_lshl_b32 s{s+1}, s{s+1}, 20"); a(f"s_sub_u32 s{s+1}, s{sRG}, s{s+1}")
    a(f"s_lshl_b32 s{s+2}, s{sJ}, 3"); a(f"s_xor_b32 s{s}, s{sWI}, 2"); a(f"s_add_u32 s{s}, s{s}, s{s+2}"); a(f"s_lshl_b32 s{s}, s{s}, 12"); a(f"s_add_u32 s{s}, s{s}, s{s+1}"); a(f"s_add_u32 s{sSRC}, s{s}, {KVA}")
    a(f"s_lshl_b32 s{s+1}, s{sWI}, 3"); a(f"s_lshr_b32 s{s}, {sum(wohead(2 * i) << (8 * i) for i in range(4))}, s{s+1}"); a(f"s_and_b32 s{s}, s{s}, 31")
    a(f"s_lshl_b32 s{s}, s{s}, 16"); a(f"s_xor_b32 s{sWRW}, s{sWR}, s{s}")
Q, SB, PB, KF, VF, OA, LS, MI = 24, 32, 64, 80, 88, 104, 120, 128
vA1, vA2, vV1 = MI, MI + 1, MI + 2
def att_setup(a):
    s = sT[2]
    a(f"v_add_u32 v{vA1}, s{sA1}, v{vL16}"); a(f"s_lshl_b32 s{s}, s{sWID}, 11"); a(f"s_add_u32 s{s}, s{s}, {QX - 8192}"); a(f"v_add_u32 v{vV1}, s{s}, v{vL16}"); a(f"v_subrev_u32 v{vA2}, {4*8192}, v{vA1}")
    for k in range(1, 4): a(f"v_add_u32 v{vWO[k]}, {k*(8*2048 - 1024)}, v{vWO[0]}")
def o_out(O, ls, r, pk=1):
    return [f"v_rcp_f32 v{r}, v{ls}"] + ([bmul(vr(O+2*p,2), vr(O+2*p,2), r) for p in range(4)] if pk else [f"v_mul_f32 v{O+p}, v{O+p}, v{r}" for p in range(8)]) + \
           [f"v_add_u32 v{O}, 0x8000, v{O}"] + [f"v_cvt_pk_bf16_f32 v{O+p}, v{O+2*p}, v{O+2*p+1}" for p in range(4)] + [f"v_and_b32 v{O}, -2, v{O}"]
def zip2(x, y): return [z for p in zip(x, y) for z in p]

def attention_A_exact(a):
    s = sT[1]; CB, MX, D0 = SB + 16, MI + 4, MI + 6
    a.label("L_exact")
    a(f"s_lshl_b32 s{s+2}, s{sRB}, 2"); a(f"s_add_u32 s{s+2}, s{s+2}, s{sTL}")
    a(f"s_lshl_b32 s{s}, s{sJ}, 15"); a(f"s_and_b32 s{s+1}, s{sA1}, 4096"); a(f"s_add_u32 s{s}, s{s}, s{s+1}"); a(f"s_add_u32 s{s}, s{s}, {RGN + KVA}"); a(f"v_add_u32 v{MI}, s{s}, v{vL16}")
    d_qk(a, D0); a(f"v_mov_b32 v{MI+1}, {BIG}"); a(f"s_min_u32 s{s+4}, s{s+2}, 8")
    for k in range(2): a(f"v_mov_b32 v{MX+k}, {BIG}")
    for r in range(24): a(f"v_mov_b32 v{OA+r}, 0")
    for ps in range(2):
        a(f"s_mov_b32 s{s+3}, 0"); a.label(f"L_ex{ps}")
        a(f"s_sub_u32 s{s}, s{s+2}, s{s+3}"); a(f"s_lshr_b32 s{s+1}, s{s}, 2"); a(f"s_lshl_b32 s{s+1}, s{s+1}, 20"); a(f"s_and_b32 s{s}, s{s}, 3"); a(f"s_lshl_b32 s{s}, s{s}, 13"); a(f"s_add_u32 s{s}, s{s}, s{s+1}")
        for k in range(2 + 2 * ps): a(f"buffer_load_dwordx4 {vr(KF+4*k,4)}, v{MI}, {sr(sWS)}, s{s} offen offset:{k*1024} sc1")
        a(f"s_lshl_b32 s{s+1}, s{s+3}, 5"); a(f"v_add_u32 v{D0+1}, s{s+1}, v{D0}")
        for q in range(16):
            aa, kt, r = q >> 3, (q >> 2) & 1, q & 3
            a(f"v_add_u32 v{CB+q}, {(16*(aa-kt) - r) & 0xffffffff}, v{D0+1}"); a(f"v_cmp_gt_u32 vcc, 0x100, v{CB+q}"); a(f"v_cndmask_b32 v{CB+q}, v{MI+1}, 0, vcc")
        a("s_waitcnt vmcnt(0)")
        for q in range(4): a(M(SB + 4 * q, KF + 4 * (q & 1), Q + 4 * (q >> 1), CB + 4 * q))
        if ps == 0:
            for q in range(0, 16, 2): a(f"v_max3_f32 v{MX + (q>>3)}, v{MX + (q>>3)}, v{SB+q}, v{SB+q+1}")
        else:
            for q in range(16): a(f"v_sub_f32 v{SB+q}, v{SB+q}, v{MX + (q>>3)}")
            for q in range(16): a(f"v_exp_f32 v{SB+q}, v{SB+q}")
            for q in range(8): a(f"v_cvt_pk_bf16_f32 v{PB+q}, v{SB+2*q}, v{SB+2*q+1}")
            for aa in range(2):
                for d in range(2): a(M(OA + 8 * aa + 4 * d, VF + 4 * d, PB + 4 * aa, OA + 8 * aa + 4 * d))
                a(M(LS + 4 * aa, SEL, PB + 4 * aa, LS + 4 * aa))
        a(f"s_add_u32 s{s+3}, s{s+3}, 1"); a(f"s_cmp_le_u32 s{s+3}, s{s+4}"); a(f"s_cbranch_scc1 L_ex{ps}")
        if ps == 0:
            for k in range(2):
                for sw in ("16", "32"): a(f"v_mov_b32 v{MI+2}, v{MX+k}"); a(f"v_permlane{sw}_swap_b32 v{MX+k}, v{MI+2}"); a(f"v_max_f32 v{MX+k}, v{MX+k}, v{MI+2}")
    a("s_nop 7"); a("s_branch L_aok")

PVAT = (1, 3, 5, 7, 9, 11); SAT = (13, 15, 17, 19)
def att_hooks(a):
    s = sT[1]; BI = MK + 8; F = MI + 3
    ret = f"s_setpc_b64 {sr(sRA,2)}"
    def fetch(base):
        for o in (16384, 0):
            a(f"s_and_b32 m0, s{sSRC}, 0x3000"); a(f"s_add_u32 m0, m0, {base + o}"); a(f"s_add_u32 s{s}, s{sSRC}, {o}")
            for k in range(4): a(f"buffer_load_dwordx4 v{vL16}, {sr(sWS)}, s{s} offen offset:{k*1024} sc1 lds")
    def gone(rb):
        l = a.sif(sRB, "eq", rb)
        for r in range(4): a(f"v_mov_b32 v{BI+r}, {BIG}")
        a.label(l)
    def wm(r):
        if WARM == 1 and WARMAT == r: l = a.sif(sL, "eq", 0); warm(a, F); a.label(l)
    a.label("L_h0")
    l = a.sif(sTL, "lt", 2); wo_whole(a, 0)
    a(f"s_lshl_b32 s{s}, s{sL}, 4"); a(f"s_add_u32 s{s+1}, s{s}, s{sJ}"); a(f"s_lshl_b32 s{s+1}, s{s+1}, 11"); a(f"s_add_u32 s{s+1}, s{s+1}, {KFL}")
    a(f"s_add_u32 s{s}, s{s}, s{sRB}"); a(f"s_lshl_b32 s{s}, s{s}, 7"); a(f"s_add_u32 s{s}, s{s}, {RFL}")
    a(f"v_bfe_u32 v{F}, v{vLANE}, 2, 1"); a(f"v_add_u32 v{F}, s{sRB}, v{F}"); a(f"v_subrev_u32 v{F}, 2, v{F}"); a(f"v_min_u32 v{F}, s{sRB}, v{F}")
    a(f"v_and_b32 v{F+1}, 3, v{vLANE}"); a(f"v_lshl_add_u32 v{F}, v{F}, 4, v{F+1}"); a(f"v_lshl_add_u32 v{F}, v{F}, 3, s{s+1}")
    a(f"v_and_b32 v{F+1}, 15, v{vLANE}"); a(f"v_lshl_add_u32 v{F+1}, v{F+1}, 3, s{s}"); a(f"v_cmp_gt_u32 vcc, 16, v{vLANE}"); a(f"v_cndmask_b32 v{F}, v{F+1}, v{F}, vcc")
    a(f"buffer_load_dwordx2 {vr(F+1,2)}, v{F}, {sr(sWS)}, 0 offen sc1"); a("s_waitcnt vmcnt(0)"); a.flagwait(F, F + 1); a.acquire()
    a.stamp("c", "kf")
    fetch(RB1); a("s_waitcnt vmcnt(4)")
    a.label(l)
    gone(0); a("s_waitcnt lgkmcnt(0)"); a("s_barrier")
    a.stamp("c", "Z")
    if ZEND: a(ret); a.label("L_h1")
    l = a.sif(sTL, "ge", 2); fetch(RB2); a.label(l)
    if E8 == 0: l = a.sif(sTL, "lt", 2); wo_whole(a, 8); a.label(l)
    a(ret)
    a.label("L_h2")
    l, l2 = a.sif(sTL, "lt", 2), a.newlabel("Lh2")
    a(f"s_waitcnt vmcnt({8 if E8 == 0 else 0})"); a("s_barrier")
    if E8 == 2: wo_whole(a, 8)
    a(f"s_branch {l2}"); a.label(l); a("s_barrier"); wo_whole(a, 24); a.label(l2); wm(2)
    a(ret)
    a.label("L_h4")
    l = a.sif(sTL, "ge", 2); a(f"s_waitcnt vmcnt({10 if WARM == 1 and WARMAT < 4 else 8})")
    if WARM == 1 and WARMAT < 4: a(f"s_cmp_eq_u32 s{sL}, 0"); a(f"s_cbranch_scc1 {l}"); a("s_waitcnt vmcnt(8)")
    a.label(l)
    gone(1); a(f"v_subrev_u32 v{vA2}, {RB1 - 32*KB - RB2}, v{vA2}"); a("s_waitcnt lgkmcnt(0)"); a("s_barrier")
    a.stamp("c", "Z3")
    l = a.sif(sTL, "ge", 2); wo_whole(a, 16); a.label(l); wm(4)
    a(ret)
def attention_A(a):
    s = sT[1]; lq = LQ(a)
    Sx = lambda k: SB + 16 * (k & 1); Px = lambda k: PB + 8 * (k & 1); Vx = lambda k: VF + 8 * (k & 1)
    MDg, MO, BI = MK, MK + 4, MK + 8
    def rd(dst, k, o):
        v, b = (vA1, (4 - k) * 8192) if k <= 4 else (vA2, (8 - k) * 8192)
        return [f"ds_read_b128 {vr(dst+4*h,4)}, v{v} offset:{b + o + h*1024}" for h in range(2)]
    subs = lambda k: [(0, 0, MDg), (1, 0, "0"), (1, 1, MDg)] if k == 0 else [(0, 0, MO), (0, 1, BI), (1, 1, MO)] if k == 8 else [(x, y, BI) for x in range(2) for y in range(2)]
    smf = lambda k: [M(Sx(k) + 8 * x + 4 * y, KF + 4 * y, Q + 4 * x, c) for x, y, c in subs(k)]
    def pv(k):
        L = []
        for x in range(2):
            for d in range(2): L.append(M(OA + 8 * x + 4 * d, Vx(k) + 4 * d, Px(k) + 4 * x, OA + 8 * x + 4 * d if k else "0"))
            L.append(M(LS + 4 * x, SEL, Px(k) + 4 * x, LS + 4 * x if k else "0"))
        return L
    a.label("L_attA")
    a("s_waitcnt lgkmcnt(0)"); a("s_barrier")
    a.stamp("c", "Y")
    l = a.sif(sWID, "ge", 4)
    for h in range(2): a(f"ds_read_b128 {vr(Q+4*h,4)}, v{vV1} offset:{h*1024}")
    a.label(l)
    emit(lq, rd(KF, 0, 0) + rd(Vx(0), 0, 2048) + [f"v_mov_b32 v{PB+2}, 0", f"v_mov_b32 v{PB+3}, 0"] + smf(0))
    for k in range(9):
        valu = []; pend = []
        for x, y, c in subs(k):
            for h in range(2):
                r = Sx(k) + 8 * x + 4 * y + 2 * h
                valu += [f"v_exp_f32 v{r}, v{r}", f"v_exp_f32 v{r+1}, v{r+1}"] + pend; pend = [f"v_cvt_pk_bf16_f32 v{Px(k) + 4*x + 2*y + h}, v{r}, v{r+1}"]
        if k == 8: valu += [f"v_mov_b32 v{Px(8)+4}, 0", f"v_mov_b32 v{Px(8)+5}, 0"]
        valu += pend
        sc = lambda n: n * len(valu) // 24
        ins = {}
        add = lambda n, L: ins.setdefault(sc(n), []).extend(L)
        back = a.newlabel("Lhb")
        for r in (1 if ZEND else 0, 2, 4):
            if 0 <= k - r <= 3:
                lt = a.newlabel("Lht"); a(f"s_cmp_eq_u32 s{sTL}, {k - r}"); a(f"s_cbranch_scc1 {lt}")
                a.tail += [lt + ":", f"s_call_b64 {sr(sRA,2)}, L_h{r & 6}"]
                if r == 1: a.tail += rd(KF, k, 0) + rd(Vx(k), k, 2048) + ["s_waitcnt lgkmcnt(2)"] + smf(k) + [f"s_call_b64 {sr(sRA,2)}, L_h1", "s_nop 3"]
                a.tail += [f"s_branch {back}"]
        a.label(back)
        if k < 8: add(0, rd(KF, k + 1, 0)); add(12, rd(Vx(k + 1), k + 1, 2048))
        if k:
            for n, x in zip(PVAT, pv(k - 1)): add(n, [x])
        if k < 8:
            for n, x in zip(SAT, smf(k + 1)): add(n, [x])
        L = []
        for n, x in enumerate(valu): L += ins.get(n, []) + [x]
        emit(lq, L)
    emit(lq, pv(8))
    a.stamp("c", "att")
    m = MI + 4
    a(f"v_mov_b32 v{m}, 0"); a(f"v_mov_b32 v{m+1}, 0")
    for p in range(8): a(f"v_maximum3_f32 v{m + (p&1)}, |v{OA+2*p}|, |v{OA+2*p+1}|, v{m + (p&1)}")
    a(f"v_min_f32 v{m+2}, v{LS}, v{LS+4}"); a(f"v_maximum3_f32 v{m}, v{m}, v{m+1}, 0"); a(f"v_cmp_nle_f32 vcc, 0x21800000, v{m+2}"); a(f"v_mul_f32 v{m}, 0x21800000, v{m}")
    a(f"s_mov_b64 {sr(s+1,2)}, vcc"); a(f"v_maximum3_f32 v{m}, v{m}, v{LS}, v{LS+4}"); a(f"v_cmp_nge_f32 vcc, 0x5d800000, v{m}"); a(f"s_or_b64 vcc, vcc, {sr(s+1,2)}")
    if FORCE_EXACT: a("s_mov_b64 vcc, -1")
    a("s_cbranch_vccnz L_exact")
    a.label("L_aok")
    a.all(zip2(o_out(OA, LS, m, OPK), o_out(OA + 8, LS + 4, m + 2, OPK)))
    a.stores([f"buffer_store_dwordx4 {vr(OA+8*x,4)}, v{vL16}, {sr(sXS)}, s{sOST} offen offset:{x*1024}" for x in range(2)])
    a.stamp("c", "o")
    a(f"s_cmp_ge_u32 s{sWID}, 4"); a("s_cbranch_scc1 L_lnext")

def attention_B(a, lq, mode, trace):
    s = sT[1]; vH, vG = vWO[1], vWO[2]
    VP, KH, S2, P2, O2, L2, R2 = [160, 170], 180, 184, 48, [76, 92], 108, [84, 100]
    BD, BP, AM, BP0 = MK, MK + 4, MK + 8, MK + 12
    Kf = lambda i: acc(2, i) if i >= 0 else KH
    order = [(j, 3) for j in KVS] + [(j, i if k % 2 else 2 - i) for k, j in enumerate((5, 4, 3, 2)) for i in range(3)] + serp((0, 1))
    tr = [t_c(2), t_c(3), t_ab(3), t_cv(0), t_cv(1)] + t_v(3) + [t_ab(2), t_ab(1)] + t_v(2) + t_v(1) + [t_c(0), t_c(1), t_ab(0)] + t_v(0)
    HV = acc(4, 3)
    def out(r, f): return [clean(r), f"buffer_store_dwordx4 {vr(r,4)}, v{vG}, {sr(sWS)}, 0 offen offset:{f*1024} sc1", f"ds_write_b128 v{vH}, {vr(r,4)} offset:{4096 + f*1024}"]
    ev = lambda i: e_v(0, i, VP[0] + 2 * i + 2) + e_v(1, i, VP[1] + 2 * i + 2)
    qs = lambda i: [f"v_mul_f32 v{AB+2*i+k}, {QSCALE}, v{AB+2*i+k}" for k in range(2)]
    mv = [f"v_mov_b32 v{VP[d]+8+k}, v{HV+2*d+k}" for d in range(2) for k in range(2)]
    c_step(lq, 1, order, tr, bar=0); trace(3)
    a.stamp("c", "g1kv")
    emit(lq, skew(e_qk(2, 3) + [out(acc(2, 3), 0) + qs(3)] + e_v(0, 3, HV) + e_v(1, 3, HV + 2) + [out(HV, 1) + mv] + e_qk(2, 2) + [qs(2)] + e_qk(2, 1) + [qs(1)] +
                                e_qk(0, 3) + e_qk(0, 2) + ev(2) + ev(1)))
    a.stamp("c", "epi")
    def pair(t0, t1):
        T = (t0, t1); L = []
        for u, i in enumerate(T): L += [M(S2 + 8 * u, Kf(i), acc(0, i), BD), M(S2 + 8 * u + 4, Kf(i - 1), acc(0, i), BP if i else BP0)]
        two = lambda f: zip2(f(0), f(1))
        def mx(u):
            b, r = S2 + 8 * u, R2[u]
            return [f"v_max3_f32 v{r}, v{b}, v{b+1}, v{b+4}", f"v_max3_f32 v{r+1}, v{b+2}, v{b+3}, v{b+6}", f"v_max_f32 v{r}, v{r}, v{b+5}", f"v_max_f32 v{r+1}, v{r+1}, v{b+7}", f"v_max_f32 v{r+2}, v{r}, v{r+1}"]
        L += two(mx)
        x, y = R2[0] + 2, R2[1] + 2
        L += [f"v_permlane16_swap_b32 v{x}, v{y}", f"v_max_f32 v{x}, v{x}, v{y}", f"v_mov_b32 v{y}, v{x}", f"v_permlane32_swap_b32 v{x}, v{y}", f"v_max_f32 v{x}, v{x}, v{y}", f"v_mov_b32 v{y}, v{x}",
              f"v_permlane16_swap_b32 v{x}, v{y}"]
        def ex(u):
            r, p = R2[u], P2 + 4 * u
            return [f"v_sub_f32 v{r}, v{r}, v{r+2}", f"v_sub_f32 v{r+1}, v{r+1}, v{r+2}", f"v_exp_f32 v{r}, v{r}", f"v_exp_f32 v{r+1}, v{r+1}", f"v_cvt_pk_bf16_f32 v{r}, v{r}, v{r}", f"v_cvt_pk_bf16_f32 v{r+1}, v{r+1}, v{r+1}"] + \
                   [f"v_and_b32 v{p+k}, v{r + (k&1)}, v{AM+k}" for k in range(4)]
        L += two(ex)
        for u, i in enumerate(T): L += [M(L2 + 4 * u, SEL, P2 + 4 * u, "0")] + [M(O2[u] + 4 * d, VP[d] + 2 * i, P2 + 4 * u, "0") for d in range(2)]
        L += two(lambda u: o_out(O2[u], L2 + 4 * u, R2[u]))
        return L
    st = lambda t0, t1, so: [f"buffer_store_dwordx4 {vr(O2[u],4)}, v{vL16}, {sr(sXS)}, s{so} offen offset:{(i&1)*1024}" for u, i in enumerate((t0, t1))]
    lq.drain()
    a(f"s_add_u32 s{s}, s{sOST}, 65536")
    L, rest = weave(pair(3, 2), skew(e_qk(2, 0) + [qs(0)] + ev(0) + e_qk(0, 1) + e_qk(0, 0)))
    a.all(L); a.all(rest)
    a.stamp("c", "qend")
    a("s_barrier")
    a.stamp("c", "Y")
    a(f"ds_read_b128 {vr(KH,4)}, v{vH}")
    for d in range(2): a(f"ds_read_b64 {vr(VP[d],2)}, v{vH} offset:{1024 + 8*d}")
    t = Asm(); g2_setup(t); L = pair(1, 0)
    a.all(L[:3]); a.stores(st(3, 2, s)); a("s_waitcnt lgkmcnt(0)")
    L, rest = weave(L[:3] + ["s_nop 0"] + L[3:], [x.strip() for x in t.lines])
    a.all(L[4:]); a.stores(st(1, 0, sOST)); a.all(rest)
    a.stamp("c", "o")
    a("s_branch L_g2")

A0, OB, WF2, GA, vO, vXL, GT = 24, 56, 120, 232, 248, 249, 250
def g2_setup(a):
    s = sT[2]
    for c in range(4): a(f"v_xor_b32 v{GA+c}, {32*c}, v{vTR}")
    for w in (1, 2):
        for c in range(4): a(f"v_add_u32 v{GA+4*w+c}, {w*64*KB}, v{GA+c}")
    a(f"v_add_u32 v{vO}, s{sOLD}, v{vL16}"); a(f"s_lshl_b32 s{s}, s{sWID}, 12"); a(f"s_add_u32 s{s}, s{s}, {XB[0]}"); a(f"v_add_u32 v{vXL}, s{s}, v{vL16}")
    a(f"s_lshl_b32 s{sOF}, s{sJ}, 12")
    for k in range(1, 4): a(f"s_xor_b32 s{sOF+k}, s{sOF}, {ror4(k) << 12}")
def o_ld(i): return [f"buffer_load_dwordx4 {vr(OB + 8*(i%8) + 4*rt,4)}, v{vO}, {sr(sXS)}, s{sOF + (i>>1)%4} offen offset:{(i&1)*2048 + rt*1024} sc1" for rt in range(2)]
def ofix_sub(a):
    a.label("L_ofix")
    a("s_waitcnt vmcnt(0)")
    for b in range(8):
        l = a.newlabel("Lfx"); a.all(a.marker([OB + 8 * b, OB + 8 * b + 4], GT, "o")); a(f"s_cbranch_vccz {l}"); a.all(o_ld(b)); a.label(l)
    a("s_waitcnt vmcnt(0)")
    a(f"s_add_u32 s{sCNT}, s{sCNT}, 1"); a(f"s_cmp_lt_u32 s{sCNT}, {SPIN}")
    a(f"s_setpc_b64 {sr(sRA,2)}")
def gemm2(a):
    s = sT[1]; lq = LQ(a); D = G2D
    ac = lambda rt, c: A0 + (rt * 4 + c) * 4
    def rd(i):
        o = wopos(i); return [f"ds_read_b64_tr_b16 {vr(WF2 + 16*(i%3) + 4*c + 2*hf,2)}, v{GA + 4*(o >> 16) + c} offset:{(o & 0xffff) + hf*2048}" for c in range(4) for hf in range(2)]
    def check(i):
        lc, lt, ok = a.newlabel("Loc"), a.newlabel("Lot"), a.newlabel("Look")
        t = a.marker([OB + 8 * (i % 8) + 4 * q for q in range(4)], GT, "o")
        a.tail += [lt + ":", f"s_call_b64 {sr(sRA,2)}, L_ofix", f"s_cbranch_scc0 {ok}"] + t + [f"s_cbranch_vccnz {lt}", f"s_branch {ok}"]
        return [[t[0]], [t[1]], [t[2]], [f"s_cbranch_vccnz {lt}", ok + ":"]]
    g2_setup(a)
    a.label("L_g2")
    if a.stamps and TRACE == 2: a("s_memrealtime s[74:75]" if RT else "s_memtime s[74:75]")
    su = rd(0) + [f"v_mov_b32 v{OB+4*b}, 0" for b in range(2 * D, 16)] + rd(1)
    for p in range(16): su += [f"v_lshlrev_b32 v{A0+2*p}, 16, v{XRES+p}", f"v_and_b32 v{A0+2*p+1}, 0xffff0000, v{XRES+p}"]
    L = sum((o_ld(i) for i in range(D)), []); k = -(-len(su) // (len(L) - 2))
    for m, x in enumerate(L): a(x); a.all(su[(m - 2) * k:(m - 1) * k] if m >= 2 else [])
    a(f"s_add_u32 s{sL}, s{sL}, 1"); a(f"s_mov_b32 s{sCNT}, 0"); c_setup(a, False); set_wo(a)
    a(f"s_waitcnt vmcnt({2*(D-2)})"); a.all(sum(check(0), []))
    a.stamp("c", "R", 1)
    for i in range(32):
        R = rd(i + 2) if i + 2 < 32 else [None] * 8
        ex = {m: [] for m in range(8)}
        n = i + D
        g = (0, 1, 4) if i % 2 == 0 else (0, 0, 4)
        if n < 32:
            if n >= 8 and n % 2 == 0: k = sOF + (n >> 1) % 4; ex[g[0]] += [f"s_xor_b32 s{k}, s{k}, {(ror4(n >> 1) ^ ror4((n >> 1) - 4)) << 12}"]
            ex[g[1]].append(o_ld(n)[0]); ex[g[2]].append(o_ld(n)[1])
        if i < 31 and i % 2:
            c = check(i + 1); ex[1].append(f"s_waitcnt vmcnt({2*(min(32, n + 1) - i - 3) - (n < 32)})")
            for q, m in enumerate((2, 3, 5, 6)): ex[m] += c[q]
        if i == 5: ex[7].append("s_barrier")
        if i == S3AT: ex[7 if i % 2 else 2].append("s_barrier")
        if a.stamps and TRACE == 2 and i % 2 == 0:
            a(f"s_sub_u32 s68, s74, s{80 if RT else sT0}"); a("s_memrealtime s[74:75]" if RT else "s_memtime s[74:75]")
            a(f"s_lshl_b32 s69, s{sL}, 4"); a(f"s_add_u32 m0, s69, {i // 2 + 48}"); a("v_writelane_b32 v7, s68, m0")
        a(f"s_waitcnt lgkmcnt({8 if i < 31 else 0})")
        order = [(c, rt ^ (c & 1)) for c in range(4) for rt in range(2)] if i < 31 else [(c, rt) for rt in range(2) for c in range(4)]
        for m, (c, rt) in enumerate(order):
            a(M(ac(rt, c), WF2 + 16 * (i % 3) + 4 * c, OB + 8 * (i % 8) + 4 * rt, ac(rt, c)))
            if R[m]: a(R[m])
            a.all(ex[m])
    assert 23 <= S3AT <= 31
    a.stamp("c", "g2end", 1)
    a(f"s_cmp_eq_u32 s{sL}, {NL}"); a("s_cbranch_scc1 L_final")
    L = []
    for f in range(4):
        L += [f"v_and_b32 v{A0+8*f}, 0xffff0000, v{A0+8*f}"] + [f"v_cvt_pk_bf16_f32 v{XRES+p}, v{A0+2*p}, v{A0+2*p+1}" for p in (4*f+1, 4*f, 4*f+2, 4*f+3)] + [f"v_or_b32 v{XRES+4*f}, 1, v{XRES+4*f}"]
        L += [f"buffer_store_dwordx4 {vr(XRES+4*f,4)}, v{vL16}, {sr(sXD)}, s{sXST} offen offset:{f*1024}", f"ds_write_b128 v{vXL}, {vr(XRES+4*f,4)} offset:{f*1024}"]
    a.stores(L)
    a("s_branch L_centry")

def gen(stamps=False):
    a = G(stamps)
    s = sT[1]
    a("s_cmp_ge_u32 s2, 256"); a("s_cbranch_scc1 L_end")
    a("s_load_dwordx16 s[48:63], s[0:1], 0"); a("s_load_dwordx2 s[64:65], s[0:1], 64")
    if stamps: a(f"s_memtime s[{sT0}:{sT0+1}]"); a("s_mov_b32 s70, 61"); a("s_mov_b32 s82, 0"); a("s_memrealtime s[80:81]")
    a("v_lshrrev_b32 v1, 6, v0"); a(f"v_readfirstlane_b32 s{sWID}, v1")
    a(f"v_and_b32 v{vLANE}, 63, v0"); a(f"v_lshlrev_b32 v{vL16}, 4, v{vLANE}")
    a(f"s_and_b32 s{s}, s2, 7"); a(f"s_lshl_b32 s{sRB}, s{s}, 1"); a(f"s_bfe_u32 s{s}, s2, 0x10003"); a(f"s_add_u32 s{sRB}, s{sRB}, s{s}"); a(f"s_lshr_b32 s{sJ}, s2, 4")
    a(f"s_mov_b32 s{sL}, 0")
    def common():
        srd(a, sWS, pWS, WS_SIZE); srd(a, sWO, pWOA, 2097152); set_bufs(a, sTS); srd(a, sWN, pWB, 6291456)
        a(f"s_mov_b32 s{sFAST}, 0"); a(f"v_mov_b32 v{vSTAMP}, 0" if not PST else "s_nop 0"); a("v_mov_b32 v7, 0"); a(f"v_mov_b32 v{vST}, {OOB}")
        a(f"s_lshl_b32 s{sRG}, s{sRB}, 20"); a(f"s_add_u32 s{sRG}, s{sRG}, {RGN}"); a(f"s_lshl_b32 s{sWR}, s{sJ}, 17")
        a(f"v_bfe_u32 v28, v{vLANE}, 2, 3"); a(f"v_bfe_u32 v29, v{vLANE}, 1, 1"); a("v_and_b32 v30, 6, v28"); a("v_xor_b32 v29, v29, v30"); a("v_lshlrev_b32 v29, 4, v29"); a("v_lshlrev_b32 v28, 7, v28")
        a(f"v_and_b32 v30, 1, v{vLANE}"); a("v_lshlrev_b32 v30, 3, v30"); a("v_add3_u32 v28, v28, v29, v30"); a(f"v_lshrrev_b32 v29, 5, v{vLANE}"); a(f"v_lshl_add_u32 v{vTR}, v29, 10, v28")
        a(f"v_lshrrev_b32 v28, 3, v{vLANE}"); a("v_and_b32 v29, 6, v28"); a(f"v_and_b32 v30, 7, v{vLANE}"); a("v_xor_b32 v29, v29, v30"); a("v_lshlrev_b32 v29, 4, v29"); a("v_lshlrev_b32 v28, 11, v28")
        a(f"s_lshl_b32 s{s}, s{sJ}, 7"); a(f"v_add3_u32 v{vWO[0]}, v28, v29, s{s}")
        sel_rows(a, SEL, 3, 0); att_once(a)
    def nonce():
        a(f"v_readfirstlane_b32 s{sN0}, v26"); a(f"v_readfirstlane_b32 s{sN1}, v27")
        a(f"s_add_u32 s{sN0}, s{sN0}, 1"); a(f"s_add_u32 s{sN1}, s{sN1}, 16"); a(f"s_and_b32 s{sN1}, s{sN1}, 0xfffffff0")
        a(f"s_getreg_b32 s{s}, hwreg(HW_REG_XCC_ID, 0, 4)"); a(f"s_or_b32 s{sN1}, s{sN1}, s{s}")
    a(f"s_cmp_lt_u32 s{sWID}, 4"); a("s_cbranch_scc1 L_cstart")
    a(f"s_sub_u32 s{sW4}, s{sWID}, 4"); a(f"s_lshl_b32 s{sMX}, s{sW4}, 12"); a(f"s_lshl_b32 s{sMW}, s{sW4}, 11")
    if ROT0 == 2: ktables(a, False, RSH); a(f"s_mov_b64 {sr(sKT,2)}, {sr(sKN,2)}")
    else: ktables(a, True, RSH)
    a(f"s_mov_b32 s{sXSH}, 7")
    loader_setup_w(a, True); loader_setup_x(a, True); kstage(a, 0)
    a("s_waitcnt lgkmcnt(0)"); srd(a, sW, pWA, 6291456); srd(a, sXS, pX, 4194304)
    if PST: a(f"v_mov_b32 v{vSTAMP}, 0"); a.stamp("l", "x1")
    if HOTF: hot_setup(a, True); a.all(hot(0) + hot(1))
    dma_w(a, 0); a.all(dma_x(0))
    if XDEL == 1: a("s_barrier")
    if PST: a.stamp("l", "rf")
    srd(a, sWS, pWS, WS_SIZE); a(f"v_mov_b32 v28, {NONCE}"); a(f"buffer_load_dwordx2 v[26:27], v28, {sr(sWS)}, 0 offen sc1")
    if not HOTF:
        hot_setup(a, True)
        for n in range(HOT0, HOT0 + 2): a.all(hot(n))
    if XDEL == 2: a("s_barrier")
    if PST: a.stamp("l", "S3")
    common(); ktables(a, False)
    a(f"s_lshl_b32 s{s}, s{sW4}, 14"); a(f"v_add_u32 v{vWP}, s{s}, v{vWO[0]}")
    loader_pre(a)
    for i in range(8): a(f"v_mov_b32 v{MRK+i}, {-1 if i < 4 else 0}")
    a(f"s_lshl_b32 s{s}, s{sRB}, 2"); a(f"s_add_u32 s{s}, s{s}, s{sW4}"); a(f"s_lshl_b32 s{s}, s{s}, 4"); a(f"s_add_u32 s{s}, s{s}, s{sJ}"); a(f"s_lshl_b32 s{sOB}, s{s}, 12")
    kstage(a, 1); a.all(dma_x(1)); dma_w(a, 1)
    for n in range(2 if HOTF else HOT0 + 2, HOTD): a.all(hot(n))
    a("s_waitcnt vmcnt(10)")
    nonce()
    if PST: a.stamp("l", "sp")
    a("s_barrier")
    a.stamp("l", "B0")
    a.all(hot(HOTD))
    a.label("L_lbody")
    if LPRIO: a(f"s_setprio {LPRIO}")
    loader(a)
    loader_next(a)
    colsum_sub(a)
    a.label("L_cstart")
    if CODEPF:
        l1 = a.sif(sWID, "eq", 3)
        a("s_getpc_b64 s[40:41]")
        a.label("L_pc")
        a(f"s_sub_u32 s40, s40, L_pc - {KNAME}"); a("s_subb_u32 s41, s41, 0")
        a(f"s_lshr_b32 s{s}, s2, 3"); a(f"s_mul_i32 s{s}, s{s}, {CODEPF * 128}"); a(f"v_lshlrev_b32 v28, 7, v{vLANE}"); a(f"v_add_u32 v28, s{s}, v28")
        a(f"s_mov_b32 s{s}, L_last - {KNAME}"); a(f"v_min_u32 v28, s{s}, v28")
        a("v_mov_b32 v29, s41"); a("v_add_co_u32 v28, vcc, s40, v28"); a("v_addc_co_u32 v29, vcc, 0, v29, vcc")
        a(f"s_mov_b64 exec, {(1 << CODEPF) - 1}"); a(f"global_load_dword v{vDUM}, v[28:29], off"); a("s_mov_b64 exec, -1")
        a.label(l1)
    io_addr(a, 24)
    a("s_waitcnt lgkmcnt(0)")
    srd(a, sXS, pX, 4194304)
    if PST: a(f"v_mov_b32 v{vSTAMP}, 0")
    if XDEL: a("s_barrier")
    for f in range(4): a(f"buffer_load_dwordx4 {vr(XRES+4*f,4)}, v{24 + (f>>1)}, {sr(sXS)}, 0 offen offset:{(f&1)*64}")
    srd(a, sWS, pWS, WS_SIZE); a(f"v_mov_b32 v28, {NONCE}"); a(f"buffer_load_dwordx2 v[26:27], v28, {sr(sWS)}, 0 offen sc1")
    common(); srd(a, sW, pWA, 6291456); c_setup(a, True); c_once(a)
    a(f"s_mov_b64 {sr(sXS,2)}, {sr(sXD,2)}"); a(f"s_mov_b64 {sr(sXD,2)}, {sr(sTS,2)}")
    a("s_waitcnt vmcnt(0)"); nonce()
    for f in range(4): a.all(row_swaps(f))
    a.stamp("c", "x0")
    a.all(stats_mfma()); stats_out(a); a(f"v_or_b32 v{vST}, {2*OOB}, v{vST}"); a("s_branch L_cfirst")
    consumer(a)
    attention_A(a)
    gemm2(a)
    ofix_sub(a); att_hooks(a); attention_A_exact(a)
    a.label("L_final")
    io_addr(a, 160)
    for f in range(4):
        for p in range(4 * f, 4 * f + 4): a(f"v_cvt_pk_bf16_f32 v{XRES+p}, v{A0+2*p}, v{A0+2*p+1}")
        if f: a.all(row_swaps(f - 1))
    a.all(row_swaps(3))
    for f in range(4): a(f"buffer_store_dwordx4 {vr(XRES+4*f,4)}, v{160 + (f>>1)}, {sr(sXD)}, 0 offen offset:{(f&1)*64}")
    a.label("L_out")
    a.stamp("c", "end", 1)
    if stamps:
        a("s_waitcnt lgkmcnt(0)"); a(f"s_sub_u32 s68, s82, s{80 if RT else sT0}"); a("s_and_b32 m0, s70, 63"); a(f"v_writelane_b32 v{vSTAMP}, s68, m0")
        a("s_memrealtime s[82:83]"); a("s_waitcnt lgkmcnt(0)"); a(f"v_writelane_b32 v{vSTAMP}, s80, 62"); a(f"v_writelane_b32 v{vSTAMP}, s82, 63")
        a(f"s_lshl_b32 s{s}, s2, 11"); a(f"s_lshl_b32 s{s+1}, s{sWID}, 8"); a(f"s_add_u32 s{s}, s{s}, s{s+1}"); a(f"s_add_u32 s{s}, s{s}, {STAMP}")
        a(f"v_lshlrev_b32 v24, 2, v{vLANE}"); a(f"buffer_store_dword v{vSTAMP}, v24, {sr(sWS)}, s{s} offen")
        if TRACE: a(f"s_add_u32 s{s}, s{s}, {1 << 20}"); a(f"buffer_store_dword v7, v24, {sr(sWS)}, s{s} offen")
    a.label("L_end")
    a("s_endpgm")
    a.all(a.tail)
    a.label("L_last")
    a("s_endpgm")
    body, n = hazard.fix(a.text())
    hdr = open(HERE + "/header3.txt").read().rstrip("\n").split("\n")
    hdr.append("; @launch grid=(256,1,1) block=(512,1,1) lds=163840")
    return kernel_file(hdr, [(KNAME, body, 256, 102, 256)]), n

if __name__ == "__main__":
    for x in sys.argv[2:]:
        if "=" in x: k, v = x.split("=", 1); assert k in globals(), k; globals()[k] = eval(v)
    txt, n = gen("stamps" in sys.argv)
    open(sys.argv[1], "w").write(txt)
    print("lines", txt.count("\n"), "nops inserted", n)
```
